```python
import torch

def _softmax(x, axis=-1):
    return torch.softmax(x, dim=axis)
def _gelu(x):
    return torch.nn.functional.gelu(x, approximate="tanh")
def _silu(x):
    return torch.nn.functional.silu(x)
def _sigmoid(x):
    return torch.sigmoid(x)
def _layernorm(x, axis=-1, eps=1e-5):
    m = x.mean(dim=axis, keepdim=True)
    v = x.var(dim=axis, keepdim=True, unbiased=False)
    return (x - m) / torch.sqrt(v + eps)
def _scatter_add(tgt, idx, src, axis=0):
    return tgt.clone().index_add_(axis, idx, src)
def _segment_sum(src, seg, n):
    out = torch.zeros((n,) + src.shape[1:], dtype=src.dtype)
    return out.index_add_(0, seg, src)
def _pad(x, pw):
    flat = tuple(v for pair in reversed(pw) for v in pair)
    return torch.nn.functional.pad(x, flat)

kernel_name = 'parallel_sum__gqa_block_cached__glu_gated_reglu__decode'

def setup_inputs():

    _w = (lambda a: (lambda t: t.to(torch.bfloat16) if t.is_floating_point() else t)(torch.as_tensor(a)))
    def _A_setup():
        B, Sq, D = 1, 1, 640
        Hq, Hkv, Sk, Dh = 32, 32, 16384, 192
        assert Hq % Hkv == 0, (Hq, Hkv)
        return {
            "x": _w((lambda *s: torch.randn(*s, dtype=torch.bfloat16) * 0.05)(B, Sq, D)),
            "k_cache": _w((lambda *s: torch.randn(*s, dtype=torch.bfloat16) * 3.2)(B, Hkv, Sk, Dh)),
            "v_cache": _w((lambda *s: torch.randn(*s, dtype=torch.bfloat16) * 1.6)(B, Hkv, Sk, Dh)),
            "wq": _w((lambda *s: torch.randn(*s, dtype=torch.bfloat16) * 3.2)(D, Hq * Dh) * (D ** -0.5)),
            "wo": _w((lambda *s: torch.randn(*s, dtype=torch.bfloat16) * 1.6)(Hq * Dh, D) * ((Hq * Dh) ** -0.5)),
        }
    _A_in = _A_setup()

    def _B_setup():
        B, S, D, F = 1, 1, 640, 1536
        return {
            "x": _w((lambda *s: torch.randn(*s, dtype=torch.bfloat16) * 0.05)(B, S, D)),
            "W_gate": _w((lambda *s: torch.randn(*s, dtype=torch.bfloat16) * 1.6)(D, F) * (2.0 / D) ** 0.5),
            "W_up": _w((lambda *s: torch.randn(*s, dtype=torch.bfloat16) * 1.6)(D, F) * (2.0 / D) ** 0.5),
            "W_down": _w((lambda *s: torch.randn(*s, dtype=torch.bfloat16) * 1.6)(F, D) * (1.0 / F) ** 0.5),
        }
    _B_in = _B_setup()

    return {
        "A_x": _A_in["x"],
        "A_k_cache": _A_in["k_cache"],
        "A_v_cache": _A_in["v_cache"],
        "A_wq": _A_in["wq"],
        "A_wo": _A_in["wo"],
        "B_x": _B_in["x"],
        "B_W_gate": _B_in["W_gate"],
        "B_W_up": _B_in["W_up"],
        "B_W_down": _B_in["W_down"],
    }

def reference(A_x, A_k_cache, A_v_cache, A_wq, A_wo, B_x, B_W_gate, B_W_up, B_W_down):
    def _A_ref(x, k_cache, v_cache, wq, wo):
        B, Sq, D = x.shape
        Hq, Dh = 32, 192
        Hkv = k_cache.shape[1]
        rep = Hq // Hkv
        q = (lambda x, *d: x.permute(*d))((x @ wq).reshape(B, Sq, Hq, Dh), 0, 2, 1, 3)
        k = (lambda x, n, axis: torch.repeat_interleave(x, n, dim=axis))(k_cache, rep, axis=1)
        v = (lambda x, n, axis: torch.repeat_interleave(x, n, dim=axis))(v_cache, rep, axis=1)
        scores = torch.einsum("bhqd,bhkd->bhqk", q, k) * (Dh ** -0.5)
        p = _softmax(scores, axis=-1)
        o = torch.einsum("bhqk,bhkd->bhqd", p, v)
        return (lambda x, *d: x.permute(*d))(o, 0, 2, 1, 3).reshape(B, Sq, Hq * Dh) @ wo

    def _B_ref(x, W_gate, W_up, W_down):
        gate = torch.einsum("bsd,df->bsf", x, W_gate)
        up = torch.einsum("bsd,df->bsf", x, W_up)
        gate = gate * (lambda x, dt: x.to(dt))(gate > 0, gate.dtype)
        h = gate * up
        return torch.einsum("bsf,fd->bsd", h, W_down)

    x = A_x
    xn = _layernorm(x, axis=-1)
    return x + _A_ref(xn, A_k_cache, A_v_cache, A_wq, A_wo) + _B_ref(xn, B_W_gate, B_W_up, B_W_down)
```

```python
import sys, struct
NAME = "parallel_sum__gqa_block_cached__glu_gated_reglu__decode"

def f2u(x):
    return struct.unpack("<I", struct.pack("<f", x))[0]

HEADER = """; Kernarg layout for this problem (96 bytes, ptrs only, base s[0:1]):
"""

QX, FX, OX, MX, YX = 0x10000, 0x50000, 0x90000, 0xD0000, 0x100000
WS_BYTES = 805306368
L_XN, L_TMP, L_QBF, L_YF, L_PART, L_ML = 0, 1280, 2816, 3200, 8320, 14464
LDS_BYTES = 14592
SPIN = 1 << 20

def gen(D=6, N=40, catch=3, diag=False, pol="nt", wo_early=0, D0=None):
    L = []
    A = L.append
    def nop(n): A(f"s_nop {n}")
    def stamp(j):
        if diag: A(f"s_memrealtime s[{40+2*j}:{41+2*j}]")
    def dpp(op, dst, src_dpp, src1, ctl, bank="0xf"):
        A(f"{op}_dpp v{dst}, v{src_dpp}, v{src1} {ctl} row_mask:0xf bank_mask:{bank}")
    def red8(regs, op):
        for ctl in ["quad_perm:[1,0,3,2]", "quad_perm:[2,3,0,1]", "row_half_mirror"]:
            if len(regs) < 3: nop(2 - len(regs) + 0) if len(regs) == 1 else nop(0)
            for r in regs: dpp(op, r, r, r, ctl)
    def redhi(regs, tmps, op, first="row_ror:8"):
        if len(regs) < 3: nop(1) if len(regs) == 1 else nop(0)
        for r in regs: dpp(op, r, r, r, first)
        for sw in ["v_permlane16_swap_b32", "v_permlane32_swap_b32"]:
            for r, t in zip(regs, tmps): A(f"v_mov_b32 v{t}, v{r}")
            nop(1)
            for r, t in zip(regs, tmps): A(f"{sw} v{t}, v{r}")
            for r, t in zip(regs, tmps): A(f"{op} v{r}, v{t}, v{r}")
    def bfr(dst, src):
        A(f"v_cvt_pk_bf16_f32 v{dst}, v{src}, v{src}")
        A(f"v_and_b32 v{dst}, s60, v{dst}")
    def srd(d, p, nbytes):
        A(f"s_mov_b32 s{d}, s{p}"); A(f"s_mov_b32 s{d+1}, s{p+1}")
        A(f"s_mov_b32 s{d+2}, {nbytes}"); A(f"s_mov_b32 s{d+3}, 0x20000")

    A(HEADER.rstrip())
    A(f"; @launch grid=(256,1,1) block=(320,1,1) lds={LDS_BYTES}")
    A('.amdgcn_target "amdgcn-amd-amdhsa--gfx950"')
    A(".text"); A(f".globl {NAME}_kernel"); A(".p2align 8"); A(f".type {NAME}_kernel,@function")
    A(f"{NAME}_kernel:")
    A("s_cmp_ge_u32 s2, 256")
    A("s_cbranch_scc1 L_end")
    A("s_load_dwordx16 s[64:79], s[0:1], 0")
    A("s_load_dwordx8 s[80:87], s[0:1], 64")
    if diag:
        for j in range(1, 8): A(f"s_mov_b64 s[{40+2*j}:{41+2*j}], 0")
    stamp(0)
    A("v_lshrrev_b32 v1, 6, v0")
    A("v_and_b32 v0, 63, v0")
    A("v_readfirstlane_b32 s3, v1")
    A("s_and_b32 s4, s2, 7"); A("s_lshl_b32 s4, s4, 5"); A("s_lshr_b32 s5, s2, 3"); A("s_add_u32 s4, s4, s5")
    A("s_lshr_b32 s5, s4, 3"); A("s_and_b32 s6, s4, 7")
    A("s_mov_b32 s60, 0xffff0000")
    A(f"s_mov_b32 s61, {f2u(192 ** -0.5):#x}")
    A(f"s_mov_b32 s62, {f2u(1.4426950408889634):#x}")
    A("v_lshrrev_b32 v36, 3, v0")
    A("v_and_b32 v37, 7, v0")
    A("v_lshlrev_b32 v38, 4, v37")
    A("v_and_b32 v39, 1, v0")
    A("v_lshlrev_b32 v39, 4, v39")
    A("v_mov_b32 v34, 0xffff")
    A("v_lshlrev_b32 v39, v39, v34")
    A("v_lshrrev_b32 v35, 1, v37")
    for r in range(4):
        A(f"v_cmp_eq_u32 vcc, {r}, v35")
        nop(1)
        A(f"v_cndmask_b32 v{4+r}, 0, v39, vcc")
    A("s_mov_b32 s36, 0x00ff00ff"); A("s_mov_b32 s37, 0xff00ff00")
    A("s_cmp_eq_u32 s3, 4")
    A("s_cbranch_scc1 L_helper")

    A("v_mul_u32_u24 v1, 384, v36")
    A("v_add_u32 v1, v1, v38")
    A(f"s_mul_i32 s7, s5, {16384*384}")
    A("s_lshl_b32 s38, s6, 2"); A("s_add_u32 s38, s38, s3"); A("s_mul_i32 s38, s38, 3072")
    A("s_add_u32 s7, s7, s38")
    A("s_waitcnt lgkmcnt(0)")
    srd(8, 66, 201326592)
    SC0 = 40
    slots = [56 + 4 * i for i in range(12)] + [104 + 4 * i for i in range(38)]
    early = set(slots[:12])
    free = list(slots)
    NK = 192; NV = 192; NWO = 9
    order = [("K", n) for n in range(NK)] + [("V", n) for n in range(NV)]
    pos = len(order) - wo_early
    order = order[:pos] + [("W", n) for n in range(NWO)] + order[pos:]
    slot_of = {}
    st = dict(I=0)
    def issue():
        kind, n = order[st["I"]]
        r = free.pop(0)
        slot_of[(kind, n)] = r
        if kind in "KV":
            g, it = divmod(n, 3)
            if it == 0 or (st["I"] > 0 and order[st["I"] - 1][0] == "W"):
                A(f"s_add_u32 s39, s7, {g * 98304}")
            s = "s[8:11]" if kind == "K" else "s[12:15]"
            A(f"buffer_load_dwordx4 v[{r}:{r+3}], v1, {s}, s39 offen offset:{128*it} {pol}")
        else:
            e, k = divmod(n, 3)
            vo = "v34" if k < 2 else "v35"
            A(f"buffer_load_dwordx4 v[{r}:{r+3}], {vo}, s[20:23], s{56+e} offen offset:{512*k} {pol}")
        st["I"] += 1
    idx = {o: i for i, o in enumerate(order)}
    landed = [0]
    def wait_for(count):
        if count > landed[0]:
            A(f"s_waitcnt vmcnt({st['I'] - count})")
            landed[0] = count
    if D0 is None: D0 = D
    for i in range(D0): issue()
    srd(12, 68, 201326592)
    srd(16, 86, WS_BYTES)
    srd(20, 72, 6144 * 640 * 2)
    srd(24, 82, 1280)
    A("s_load_dword s63, s[86:87], 0")
    A("s_min_u32 s38, s4, 39"); A("s_lshl_b32 s38, s38, 5"); A("s_lshl_b32 s59, s3, 3"); A("s_add_u32 s38, s38, s59")
    A("s_load_dwordx2 s[88:89], s[64:65], s38")
    A("s_mov_b32 s90, s38")
    A("v_mul_u32_u24 v34, 1280, v36"); A("v_add_u32 v34, v34, v38")
    A("s_lshl_b32 s38, s3, 7"); A("v_add_u32 v34, s38, v34")
    A("s_cmp_ge_u32 s3, 2"); A("s_cselect_b32 s38, 0x40000000, 0"); A("v_add_u32 v35, s38, v34")
    A("s_mul_i32 s56, s4, 30720"); A("s_add_u32 s57, s56, 10240"); A("s_add_u32 s58, s56, 20480")
    A("v_mov_b32 v2, 0xff800000")
    A("v_mov_b32 v3, 0")
    dd = D0
    while st["I"] < N:
        if dd < D and st["I"] >= 8:
            dd += 1
        else:
            wait_for(st["I"] - dd + 1)
        issue()
    A("s_waitcnt lgkmcnt(0)")
    A("s_add_u32 s63, s63, 0x9E3779B9")
    stamp(1)
    A("s_barrier")
    for it in range(3): A(f"ds_read_b128 v[{8+4*it}:{11+4*it}], v38 offset:{L_QBF + 128*it}")
    A("s_waitcnt lgkmcnt(0)")
    stamp(2)

    def prep(g):
        A(f"v_fma_f32 v33, v{SC0+g}, s62, -v2")
        A("v_exp_f32 v33, v33")
        nop(0)
        A("v_add_f32 v3, v3, v33")
        A("v_cvt_pk_bf16_f32 v33, v33, v33")
        for r in range(4): A(f"v_and_b32 v{28+r}, v33, v{4+r}")
    ACC = [8, 12, 16]
    def consume(kind, n):
        r = slot_of[(kind, n)]
        g, it = divmod(n, 3)
        if kind == "K":
            for j in range(4):
                c = "0" if (it == 0 and j == 0) else "v32"
                A(f"v_dot2_f32_bf16 v32, v{r+j}, v{8+4*it+j}, {c}")
            if it == 2:
                nop(2)
                dpp("v_add_f32", 33, 32, 32, "quad_perm:[1,0,3,2]"); nop(1)
                dpp("v_add_f32", 33, 33, 33, "quad_perm:[2,3,0,1]"); nop(1)
                dpp("v_add_f32", 33, 33, 33, "row_half_mirror")
                bfr(33, 33)
                A("v_mul_f32 v33, s61, v33")
                A("v_cvt_pk_bf16_f32 v33, v33, v33")
                A(f"v_and_b32 v{SC0+g}, s60, v33")
                A(f"v_max_f32 v2, v2, v{SC0+g}")
        else:
            c = "0" if g == 0 else f"v[{ACC[it]}:{ACC[it]+3}]"
            A(f"v_mfma_f32_16x16x32_bf16 v[{ACC[it]}:{ACC[it]+3}], v[28:31], v[{r}:{r+3}], {c}")
            if it == 2 and g < 63:
                prep(g + 1)
                if g + 1 == 63:
                    redhi([3], [33], "v_add_f32")
                nop(1)
        if r not in early: free.append(r)
    def transition():
        stamp(3)
        redhi([2], [33], "v_max_f32")
        A("v_mul_f32 v2, s62, v2")
        prep(0)
        nop(1)
    work = [("K", n) for n in range(NK)] + [("T", 0)] + [("V", n) for n in range(NV)]
    wi = 0
    total = len(order)
    while wi < len(work):
        cnt = 0
        while wi < len(work) and cnt < catch:
            k = work[wi]
            if k[0] == "T":
                transition(); wi += 1; cnt = catch; break
            if idx[k] < landed[0]:
                consume(*k); wi += 1; cnt += 1
            else:
                break
        if wi >= len(work): break
        if st["I"] < total:
            wait_for(st["I"] - D + 1)
            issue()
            if all(o[0] == "W" for o in order[st["I"]:]) and idx[("V", NV - 1)] < landed[0] + 1:
                while st["I"] < total: issue()
        else:
            k = work[wi]
            if k[0] != "T": wait_for(idx[k] + 1)
    while st["I"] < total: issue()
    stamp(4)
    A("v_lshrrev_b32 v20, 5, v0"); A("v_mul_u32_u24 v20, 768, v20")
    A("v_lshlrev_b32 v21, 5, v37"); A("v_add_u32 v20, v20, v21")
    A("v_and_b32 v21, 16, v0"); A("v_add_u32 v20, v20, v21")
    A("s_mul_i32 s38, s3, 1536"); A("v_add_u32 v20, s38, v20")
    A("s_lshl_b32 s38, s3, 3"); A("v_mov_b32 v21, s38")
    A(f"ds_write_b64 v21, v[2:3] offset:{L_ML}")
    A("s_mov_b64 exec, s[36:37]")
    for it in range(3): A(f"ds_write_b128 v20, v[{ACC[it]}:{ACC[it]+3}] offset:{L_PART + 256*it}")
    A("s_mov_b64 exec, -1")
    A("v_lshlrev_b32 v22, 7, v37"); A("v_lshlrev_b32 v23, 4, v36"); A("v_add_u32 v22, v22, v23")
    A(f"s_lshl_b32 s91, s4, 10"); A(f"s_add_u32 s91, s91, {OX}")
    A(f"s_lshl_b32 s92, s5, 7"); A(f"s_add_u32 s92, s92, {MX}")
    A("s_waitcnt lgkmcnt(0)")
    A("s_barrier")
    stamp(5)
    A("s_cmp_lg_u32 s3, 0")
    A("s_cbranch_scc1 L_gather1")
    A("v_mov_b32 v21, 0")
    A(f"ds_read_b128 v[40:43], v21 offset:{L_ML}")
    A(f"ds_read_b128 v[44:47], v21 offset:{L_ML+16}")
    A("v_mul_u32_u24 v24, 24, v36"); A("v_add_u32 v24, v24, v37"); A("v_lshlrev_b32 v24, 2, v24")
    A(f"v_add_u32 v24, {L_PART}, v24")
    for w in range(4):
        if w: A(f"v_add_u32 v{24+w}, {1536*w}, v24")
        for e in range(3):
            r = 48 + w * 6 + e * 2
            A(f"ds_read2_b32 v[{r}:{r+1}], v{24+w} offset0:{8*e} offset1:{8*e+192}")
    A("v_lshlrev_b32 v23, 10, v36"); A("v_add_u32 v23, v23, v38")
    A("s_lshl_b32 s38, s5, 13"); A("s_lshl_b32 s39, s6, 7"); A("s_add_u32 s38, s38, s39"); A(f"s_add_u32 s38, s38, {OX}")
    A("s_lshl_b32 s39, s6, 4"); A("s_add_u32 s39, s39, s92")
    A("s_waitcnt lgkmcnt(12)")
    A("v_max3_f32 v72, v40, v42, v44"); A("v_max_f32 v72, v72, v46")
    for w in range(4): A(f"v_sub_f32 v{40+2*w}, v{40+2*w}, v72")
    for w in range(4): A(f"v_exp_f32 v{40+2*w}, v{40+2*w}")
    nop(0)
    A("v_mul_f32 v73, v40, v41")
    for w in range(1, 4): A(f"v_fmac_f32 v73, v{40+2*w}, v{41+2*w}")
    A("v_mov_b32 v74, 0"); A("v_mov_b32 v75, s63"); A("v_mov_b32 v79, s63")
    A("s_waitcnt lgkmcnt(0)")
    for w in range(4):
        for e in range(3):
            r = 48 + w * 6 + e * 2
            A(f"v_add_f32 v{r}, v{r}, v{r+1}")
    for e in range(3): A(f"v_mul_f32 v{76+e}, v40, v{48+e*2}")
    for w in range(1, 4):
        for e in range(3): A(f"v_fmac_f32 v{76+e}, v{40+2*w}, v{48+w*6+e*2}")
    A("buffer_store_dwordx4 v[76:79], v23, s[16:19], s38 offen sc1")
    A("s_mov_b64 exec, 1")
    A("buffer_store_dwordx4 v[72:75], v21, s[16:19], s39 offen sc1")
    A("s_mov_b64 exec, -1")
    A("L_gather1:")
    A("v_lshrrev_b32 v24, 5, v0"); A("v_lshlrev_b32 v24, 2, v24")
    A("v_and_b32 v25, 8, v0")
    A("v_cmp_ne_u32 vcc, 0, v25")
    nop(1)
    A("v_cndmask_b32 v24, v24, v25, vcc")
    A("v_add_u32 v24, s3, v24")
    A("v_lshlrev_b32 v25, 4, v24"); A("v_lshlrev_b32 v26, 1, v37"); A("v_add_u32 v25, v25, v26")
    A("v_bfe_u32 v26, v0, 4, 1"); A("v_add_u32 v25, v25, v26")
    A("v_min_u32 v26, 159, v25"); A("v_lshlrev_b32 v26, 4, v26")
    A(f"ds_read_b128 v[84:87], v26 offset:{L_YF}")
    A(f"ds_read_b128 v[88:91], v26 offset:{L_YF+2560}")
    A("v_lshrrev_b32 v26, 2, v25"); A("v_lshlrev_b32 v26, 14, v26")
    A("v_and_b32 v27, 3, v25"); A("v_lshlrev_b32 v27, 4, v27"); A("v_add_u32 v26, v26, v27")
    A("v_and_b32 v27, 40, v0")
    A("v_cmp_eq_u32 vcc, 40, v27")
    A("v_cmp_lt_u32 s[38:39], 9, v24")
    A("s_or_b64 vcc, vcc, s[38:39]")
    A("v_mov_b32 v27, 0x40000000")
    nop(0)
    A("v_cndmask_b32 v26, v26, v27, vcc")
    A(f"s_lshl_b32 s93, s4, 6"); A(f"s_add_u32 s93, s93, {YX}")
    A("s_and_b32 s94, s63, 0xff"); A("s_mov_b32 s95, 0xffffff00"); A("v_mov_b32 v27, s94")
    A(f"s_mov_b32 s38, {SPIN}")
    A("L_poll1:")
    A("buffer_load_dwordx4 v[40:43], v22, s[16:19], s91 offen sc1")
    A("buffer_load_dwordx4 v[44:47], v38, s[16:19], s92 offen sc1")
    A("s_waitcnt vmcnt(0)")
    A("v_cmp_ne_u32 vcc, s63, v43")
    A("v_cmp_ne_u32 s[96:97], s63, v47")
    A("s_or_b64 vcc, vcc, s[96:97]")
    A("s_cbranch_vccz L_got1")
    A("s_sub_u32 s38, s38, 1")
    A("s_cbranch_scc0 L_poll1")
    A("L_got1:")
    stamp(6)
    A("v_mov_b32 v46, v44")
    red8([46], "v_max_f32")
    A("v_sub_f32 v44, v44, v46")
    A("v_exp_f32 v44, v44")
    nop(0)
    A("v_mul_f32 v43, v44, v45")
    for e in range(3): A(f"v_mul_f32 v{40+e}, v44, v{40+e}")
    nop(0)
    red8([43, 40, 41, 42], "v_add_f32")
    A("v_rcp_f32 v43, v43")
    nop(0)
    for e in range(3): A(f"v_mul_f32 v{40+e}, v43, v{40+e}")
    for e in range(3): A(f"v_cvt_pk_bf16_f32 v{40+e}, v{40+e}, v{40+e}")
    for e in range(3):
        for r in range(4): A(f"v_and_b32 v{48+4*e+r}, v{40+e}, v{4+r}")
    nop(1)
    YA = [60, 64, 68]
    for e in range(3):
        for k in range(3):
            r = slot_of[("W", 3 * e + k)]
            c = "0" if e == 0 else f"v[{YA[k]}:{YA[k]+3}]"
            A(f"v_mfma_f32_16x16x32_bf16 v[{YA[k]}:{YA[k]+3}], v[{48+4*e}:{51+4*e}], v[{r}:{r+3}], {c}")
    A("s_waitcnt lgkmcnt(0)")
    for r in range(4): A(f"v_add_f32 v{84+r}, v{84+r}, v{88+r}")
    nop(2)
    for r in range(4): A(f"v_permlane32_swap_b32 v{60+r}, v{64+r}")
    for r in range(4): A(f"v_mov_b32 v{72+r}, v{68+r}")
    nop(1)
    for r in range(4): A(f"v_permlane32_swap_b32 v{68+r}, v{72+r}")
    for r in range(4): dpp("v_add_f32", 76 + r, 64 + r, 60 + r, "row_ror:8")
    for r in range(4): dpp("v_add_f32", 76 + r, 68 + r, 72 + r, "row_ror:8", bank="0xc")
    for r in range(4): A(f"v_add_f32 v{76+r}, v{76+r}, v{84+r}")
    for r in range(4): A(f"v_and_or_b32 v{76+r}, v{76+r}, s95, v27")
    A("buffer_store_dwordx4 v[76:79], v26, s[16:19], s93 offen sc1")
    A("s_cmp_ge_u32 s4, 40")
    A("s_cbranch_scc1 L_fin")
    A("v_lshlrev_b32 v22, 6, v0")
    A("s_lshl_b32 s91, s4, 14"); A("s_lshl_b32 s38, s3, 4"); A("s_add_u32 s91, s91, s38"); A(f"s_add_u32 s91, s91, {YX}")
    for k in range(1, 4): A(f"s_add_u32 s{91+k}, s91, {4096*k}")
    A("s_and_b32 s39, s63, 0xff")
    A(f"s_mov_b32 s38, {SPIN}")
    A("L_poll2:")
    for k in range(4): A(f"buffer_load_dwordx4 v[{40+4*k}:{43+4*k}], v22, s[16:19], s{91+k} offen sc1")
    A("s_waitcnt vmcnt(0)")
    A("v_or3_b32 v56, v40, v41, v42"); A("v_and_b32 v57, v40, v41"); A("v_and_b32 v57, v57, v42")
    for r in range(43, 55, 2):
        A(f"v_or3_b32 v56, v56, v{r}, v{r+1}"); A(f"v_and_b32 v57, v57, v{r}"); A(f"v_and_b32 v57, v57, v{r+1}")
    A("v_or_b32 v56, v56, v55"); A("v_and_b32 v57, v57, v55")
    A("v_and_b32 v56, 0xff, v56"); A("v_and_b32 v57, 0xff, v57")
    A("v_cmp_ne_u32 vcc, s39, v56")
    A("v_cmp_ne_u32 s[96:97], s39, v57")
    A("s_or_b64 vcc, vcc, s[96:97]")
    A("s_cbranch_vccz L_got2")
    A("s_sub_u32 s38, s38, 1")
    A("s_cbranch_scc0 L_poll2")
    A("L_got2:")
    for r in range(40, 56): A(f"v_and_b32 v{r}, s95, v{r}")
    for r in range(4):
        A(f"v_add_f32 v{40+r}, v{40+r}, v{44+r}"); A(f"v_add_f32 v{48+r}, v{48+r}, v{52+r}")
    for r in range(4): A(f"v_add_f32 v{40+r}, v{40+r}, v{48+r}")
    nop(0)
    red8([40, 41, 42, 43], "v_add_f32")
    redhi([40, 41, 42, 43], [44, 45, 46, 47], "v_add_f32")
    A("s_lshl_b32 s38, s88, 16"); A("s_and_b32 s39, s88, s60"); A("s_lshl_b32 s96, s89, 16"); A("s_and_b32 s97, s89, s60")
    A("v_add_f32 v40, s38, v40"); A("v_add_f32 v41, s39, v41"); A("v_add_f32 v42, s96, v42"); A("v_add_f32 v43, s97, v43")
    A("v_cvt_pk_bf16_f32 v40, v40, v41"); A("v_cvt_pk_bf16_f32 v41, v42, v43")
    A("v_mov_b32 v21, 0"); A("v_mov_b32 v44, s63")
    A("s_mov_b64 exec, 1")
    A("buffer_store_dwordx2 v[40:41], v21, s[24:27], s90 offen")
    A("s_add_u32 s38, s4, s3")
    A("s_cmp_lg_u32 s38, 0")
    A("s_cbranch_scc1 L_noep")
    A("buffer_store_dword v44, v21, s[16:19], 0 offen")
    A("L_noep:")
    A("s_mov_b64 exec, -1")
    A("s_branch L_fin")

    A("L_helper:")
    A("s_setprio 3")
    A("v_lshlrev_b32 v1, 2, v0")
    A("v_mul_u32_u24 v2, 12288, v36"); A("v_add_u32 v2, v2, v38")
    A(f"s_mul_i32 s7, s6, {80*12288}"); A("s_mul_i32 s38, s5, 384"); A("s_add_u32 s7, s7, s38")
    A("s_waitcnt lgkmcnt(0)")
    srd(8, 64, 1280)
    srd(20, 70, 640 * 6144 * 2)
    for k in range(5): A(f"buffer_load_dword v{40+k}, v1, s[8:11], 0 offen offset:{256*k}")
    WQ = 100
    for gq in range(10):
        if gq: A(f"s_add_u32 s7, s7, {8*12288}")
        for it in range(3):
            r = WQ + 12 * gq + 4 * it
            A(f"buffer_load_dwordx4 v[{r}:{r+3}], v2, s[20:23], s7 offen offset:{128*it} {pol}")
    A("s_load_dword s63, s[86:87], 0")
    srd(16, 86, WS_BYTES)
    srd(24, 76, 640 * 1536 * 2); srd(28, 78, 640 * 1536 * 2); srd(32, 80, 1536 * 640 * 2)
    A("s_waitcnt vmcnt(30)")
    for k in range(5):
        A(f"v_lshlrev_b32 v{50+2*k}, 16, v{40+k}"); A(f"v_and_b32 v{51+2*k}, s60, v{40+k}")
    A("v_add_f32 v45, v50, v51")
    for k in range(2, 10): A(f"v_add_f32 v45, v45, v{50+k}")
    red8([45], "v_add_f32"); redhi([45], [46], "v_add_f32")
    A(f"v_mul_f32 v45, {f2u(1/640):#x}, v45")
    A("v_sub_f32 v47, v50, v45"); A("v_mul_f32 v46, v47, v47")
    for k in range(1, 10):
        A(f"v_sub_f32 v47, v{50+k}, v45"); A("v_fmac_f32 v46, v47, v47")
    red8([46], "v_add_f32"); redhi([46], [47], "v_add_f32")
    A(f"v_mul_f32 v46, {f2u(1/640):#x}, v46")
    bfr(45, 45); bfr(46, 46)
    A(f"v_add_f32 v46, {f2u(1e-5):#x}, v46"); bfr(46, 46)
    A("v_sqrt_f32 v46, v46"); nop(0); bfr(46, 46)
    A("v_rcp_f32 v47, v46")
    for k in range(10):
        A(f"v_sub_f32 v{50+k}, v{50+k}, v45"); bfr(50 + k, 50 + k)
    for k in range(10):
        A(f"v_mul_f32 v48, v{50+k}, v47")
        A(f"v_fma_f32 v49, -v48, v46, v{50+k}")
        A(f"v_fma_f32 v{50+k}, v49, v47, v48")
    for k in range(5):
        A(f"v_cvt_pk_bf16_f32 v{40+k}, v{50+2*k}, v{51+2*k}")
        A(f"ds_write_b32 v1, v{40+k} offset:{L_XN + 256*k}")
    A("s_mul_i32 s38, s6, 160"); A("v_lshlrev_b32 v3, 1, v36"); A("v_add_u32 v3, s38, v3")
    for gq in range(10): A(f"ds_read_u16 v{60+gq}, v3 offset:{L_XN + 16*gq}")
    A("v_lshrrev_b32 v20, 5, v0"); A("v_mul_u32_u24 v20, 768, v20")
    A("v_lshlrev_b32 v21, 5, v37"); A("v_add_u32 v20, v20, v21")
    A("v_and_b32 v21, 16, v0"); A("v_add_u32 v20, v20, v21")
    A("v_mul_u32_u24 v21, 12, v0"); A(f"v_add_u32 v21, {L_TMP}, v21")
    A("v_lshlrev_b32 v22, 4, v0")
    A("s_waitcnt lgkmcnt(0)")
    A("s_add_u32 s63, s63, 0x9E3779B9")
    for gq in range(10): A(f"v_lshl_or_b32 v{60+gq}, v{60+gq}, 16, v{60+gq}")
    for gq in range(10):
        sel = 28 if gq % 2 == 0 else 32
        for r in range(4): A(f"v_and_b32 v{sel+r}, v{60+gq}, v{4+r}")
        A(f"s_waitcnt vmcnt({27 - 3*gq})")
        nop(0)
        for it in range(3):
            r = WQ + 12 * gq + 4 * it
            c = "0" if gq == 0 else f"v[{8+4*it}:{11+4*it}]"
            A(f"v_mfma_f32_16x16x32_bf16 v[{8+4*it}:{11+4*it}], v[{sel}:{sel+3}], v[{r}:{r+3}], {c}")
    stamp(1)
    A(f"s_lshl_b32 s38, s4, 10"); A(f"s_add_u32 s38, s38, {QX}")
    A(f"s_lshl_b32 s91, s5, 13"); A(f"s_add_u32 s91, s91, {QX}"); A("s_add_u32 s92, s91, 4096")
    A("v_mov_b32 v43, s63")
    nop(3)
    A("s_mov_b64 exec, s[36:37]")
    for it in range(3): A(f"ds_write_b128 v20, v[{8+4*it}:{11+4*it}] offset:{L_TMP + 256*it}")
    A("s_mov_b64 exec, -1")
    for e in range(3): A(f"ds_read2_b32 v[{44+2*e}:{45+2*e}], v21 offset0:{e} offset1:{e+192}")
    A("s_waitcnt lgkmcnt(0)")
    for e in range(3): A(f"v_add_f32 v{40+e}, v{44+2*e}, v{45+2*e}")
    A("buffer_store_dwordx4 v[40:43], v22, s[16:19], s38 offen sc1")
    stamp(2)
    A(f"s_mov_b32 s38, {SPIN}")
    A("L_pollq:")
    for p in range(8):
        A(f"buffer_load_dwordx4 v[{100+4*p}:{103+4*p}], v22, s[16:19], s{91 + p//4} offen offset:{1024*(p%4)} sc1")
    A("s_waitcnt vmcnt(0)")
    A("v_xor_b32 v44, s63, v103")
    for p in range(1, 8):
        A(f"v_xor_b32 v45, s63, v{103+4*p}"); A("v_or_b32 v44, v44, v45")
    A("v_cmp_ne_u32 vcc, 0, v44")
    A("s_cbranch_vccz L_gotq")
    A("s_sub_u32 s38, s38, 1")
    A("s_cbranch_scc0 L_pollq")
    A("L_gotq:")
    stamp(3)
    for p in range(1, 8):
        for e in range(3): A(f"v_add_f32 v{100+e}, v{100+e}, v{100+4*p+e}")
    A("v_cvt_pk_bf16_f32 v44, v100, v101"); A("v_cvt_pk_bf16_f32 v45, v102, v102")
    A("v_mul_u32_u24 v23, 6, v0")
    A(f"ds_write_b16 v23, v44 offset:{L_QBF}")
    A(f"ds_write_b16_d16_hi v23, v44 offset:{L_QBF+2}")
    A(f"ds_write_b16 v23, v45 offset:{L_QBF+4}")
    A("s_waitcnt lgkmcnt(0)")
    A("s_barrier")
    A("s_setprio 0")
    stamp(4)
    A("v_mul_u32_u24 v2, 3072, v36"); A("v_add_u32 v2, v2, v38")
    A("v_mov_b32 v24, 0x40000000")
    A("v_cmp_lt_u32 vcc, 5, v37"); nop(1)
    A("v_cndmask_b32 v2, v2, v24, vcc")
    A(f"s_mul_i32 s7, s6, {80*3072}"); A("s_mul_i32 s38, s5, 96"); A("s_add_u32 s7, s7, s38")
    FD = 4
    def fissue(gq):
        if gq: A(f"s_add_u32 s7, s7, {8*3072}")
        A(f"buffer_load_dwordx4 v[{100+8*gq}:{103+8*gq}], v2, s[24:27], s7 offen {pol}")
        A(f"buffer_load_dwordx4 v[{104+8*gq}:{107+8*gq}], v2, s[28:31], s7 offen {pol}")
    for gq in range(FD): fissue(gq)
    for gq in range(10):
        sel = 28 if gq % 2 == 0 else 32
        for r in range(4): A(f"v_and_b32 v{sel+r}, v{60+gq}, v{4+r}")
        nis = min(gq + FD, 10)
        A(f"s_waitcnt vmcnt({2*(nis - gq - 1)})")
        if gq + FD < 10: fissue(gq + FD)
        else: nop(0)
        for m in range(2):
            r = 100 + 8 * gq + 4 * m
            c = "0" if gq == 0 else f"v[{8+4*m}:{11+4*m}]"
            A(f"v_mfma_f32_16x16x32_bf16 v[{8+4*m}:{11+4*m}], v[{sel}:{sel+3}], v[{r}:{r+3}], {c}")
    A("v_mul_u32_u24 v2, 1280, v36"); A("v_add_u32 v2, v2, v38")
    A("v_cmp_lt_u32 vcc, 5, v36"); nop(1)
    A("v_cndmask_b32 v2, v2, v24, vcc")
    A(f"s_mul_i32 s7, s4, {6*1280}")
    for lc in range(10):
        A(f"buffer_load_dwordx4 v[{200+4*lc}:{203+4*lc}], v2, s[32:35], s7 offen offset:{128*lc} {pol}")
    A("s_mov_b64 exec, s[36:37]")
    for m in range(2): A(f"ds_write_b128 v20, v[{8+4*m}:{11+4*m}] offset:{L_TMP + 256*m}")
    A("s_mov_b64 exec, -1")
    A("v_mul_u32_u24 v21, 6, v36"); A("v_add_u32 v21, v21, v37"); A("v_lshlrev_b32 v21, 2, v21"); A(f"v_add_u32 v21, {L_TMP}, v21")
    A("v_add_u32 v23, 256, v21")
    A("ds_read2_b32 v[44:45], v21 offset0:0 offset1:192")
    A("ds_read2_b32 v[46:47], v23 offset0:0 offset1:192")
    A("v_lshlrev_b32 v23, 10, v36"); A("v_add_u32 v23, v23, v38")
    A("s_lshl_b32 s38, s5, 13"); A("s_lshl_b32 s39, s6, 7"); A("s_add_u32 s38, s38, s39"); A(f"s_add_u32 s38, s38, {FX}")
    A("v_cmp_gt_u32 vcc, 6, v37")
    A("s_waitcnt lgkmcnt(0)")
    A("v_add_f32 v40, v44, v45"); A("v_add_f32 v41, v46, v47")
    A("v_cndmask_b32 v40, 0, v40, vcc"); A("v_cndmask_b32 v41, 0, v41, vcc")
    A("v_mov_b32 v42, 0")
    A("buffer_store_dwordx4 v[40:43], v23, s[16:19], s38 offen sc1")
    A("v_lshlrev_b32 v22, 7, v37"); A("v_lshlrev_b32 v25, 4, v36"); A("v_add_u32 v22, v22, v25")
    A(f"s_lshl_b32 s91, s4, 10"); A(f"s_add_u32 s91, s91, {FX}")
    A(f"s_mov_b32 s38, {SPIN}")
    A("L_pollf:")
    A("buffer_load_dwordx4 v[44:47], v22, s[16:19], s91 offen sc1")
    A("s_waitcnt vmcnt(0)")
    A("v_cmp_ne_u32 vcc, s63, v47")
    A("s_cbranch_vccz L_gotf")
    A("s_sleep 8")
    A("s_sub_u32 s38, s38, 1")
    A("s_cbranch_scc0 L_pollf")
    A("L_gotf:")
    red8([44, 45], "v_add_f32")
    bfr(44, 44); bfr(45, 45)
    A("v_max_f32 v44, 0, v44")
    A("v_mul_f32 v44, v44, v45")
    A("v_cvt_pk_bf16_f32 v44, v44, v44")
    for r in range(4): A(f"v_and_b32 v{28+r}, v44, v{4+r}")
    nop(1)
    for lc in range(10):
        A(f"v_mfma_f32_16x16x32_bf16 v[{100+4*lc}:{103+4*lc}], v[28:31], v[{200+4*lc}:{203+4*lc}], 0")
    A("v_lshrrev_b32 v20, 5, v0"); A("v_mul_u32_u24 v20, 2560, v20")
    A("v_lshlrev_b32 v21, 5, v37"); A("v_add_u32 v20, v20, v21")
    A("v_and_b32 v21, 16, v0"); A("v_add_u32 v20, v20, v21")
    nop(3)
    A("s_mov_b64 exec, s[36:37]")
    for lc in range(10): A(f"ds_write_b128 v20, v[{100+4*lc}:{103+4*lc}] offset:{L_YF + 256*lc}")
    A("s_mov_b64 exec, -1")
    A("s_waitcnt lgkmcnt(0)")
    stamp(5)
    A("s_barrier")

    A("L_fin:")
    if diag:
        stamp(7)
        A("s_waitcnt lgkmcnt(0)")
        A("s_mul_i32 s38, s2, 5"); A("s_add_u32 s38, s38, s3"); A("s_lshl_b32 s38, s38, 6"); A(f"s_add_u32 s38, s38, {700<<20}")
        A("v_mov_b32 v6, 0")
        for j in range(8):
            A(f"v_mov_b32 v2, s{40+2*j}"); A(f"v_mov_b32 v3, s{41+2*j}")
            A(f"buffer_store_dwordx2 v[2:3], v6, s[16:19], s38 offen offset:{8*j}")
            nop(1)
    A("L_end:")
    A("s_endpgm")
    A('.section .rodata,"a"'); A(".p2align 6")
    A(f".amdhsa_kernel {NAME}_kernel")
    A("  .amdhsa_next_free_vgpr 256"); A("  .amdhsa_next_free_sgpr 102"); A("  .amdhsa_accum_offset 256")
    A("  .amdhsa_group_segment_fixed_size 0"); A("  .amdhsa_kernarg_size 96"); A("  .amdhsa_user_sgpr_count 2")
    A("  .amdhsa_user_sgpr_kernarg_segment_ptr 1"); A("  .amdhsa_system_sgpr_workgroup_id_x 1")
    A(".end_amdhsa_kernel")
    return "\n".join(L) + "\n"

if __name__ == "__main__":
    import ast
    out = sys.argv[1]
    kw = {}
    for a in sys.argv[2:]:
        k, v = a.split("=")
        try: v = ast.literal_eval(v)
        except Exception: pass
        kw[k] = v
    open(out, "w").write(gen(**kw))
```

```python
import sys, struct
NAME = "parallel_sum__gqa_block_cached__glu_gated_reglu__decode"

def f2u(x):
    return struct.unpack("<I", struct.pack("<f", x))[0]

HEADER = """; Kernarg layout for this problem (96 bytes, ptrs only, base s[0:1]):
"""

QX, FX, OX, MX, YX = 0x10000, 0x50000, 0x90000, 0xD0000, 0x100000
WS_BYTES = 805306368
L_XN, L_TMP, L_QBF, L_YF, L_PART, L_ML = 0, 1280, 2816, 3200, 8320, 14464
LDS_BYTES = 14592
SPIN = 1 << 20

def gen(D=6, N=40, catch=3, diag=False, pol="nt", wo_early=0, D0=None, dbgtime=False):
    L = []
    A = L.append
    def nop(n): A(f"s_nop {n}")
    def stamp(j):
        if diag: A(f"s_memrealtime s[{40+2*j}:{41+2*j}]")
    def dpp(op, dst, src_dpp, src1, ctl, bank="0xf"):
        A(f"{op}_dpp v{dst}, v{src_dpp}, v{src1} {ctl} row_mask:0xf bank_mask:{bank}")
    def red8(regs, op):
        for ctl in ["quad_perm:[1,0,3,2]", "quad_perm:[2,3,0,1]", "row_half_mirror"]:
            if len(regs) < 3: nop(2 - len(regs) + 0) if len(regs) == 1 else nop(0)
            for r in regs: dpp(op, r, r, r, ctl)
    def redhi(regs, tmps, op, first="row_ror:8"):
        if len(regs) < 3: nop(1) if len(regs) == 1 else nop(0)
        for r in regs: dpp(op, r, r, r, first)
        for sw in ["v_permlane16_swap_b32", "v_permlane32_swap_b32"]:
            for r, t in zip(regs, tmps): A(f"v_mov_b32 v{t}, v{r}")
            nop(1)
            for r, t in zip(regs, tmps): A(f"{sw} v{t}, v{r}")
            for r, t in zip(regs, tmps): A(f"{op} v{r}, v{t}, v{r}")
    def bfr(dst, src):
        A(f"v_cvt_pk_bf16_f32 v{dst}, v{src}, v{src}")
        A(f"v_and_b32 v{dst}, s60, v{dst}")
    def srd(d, p, nbytes):
        A(f"s_mov_b32 s{d}, s{p}"); A(f"s_mov_b32 s{d+1}, s{p+1}")
        A(f"s_mov_b32 s{d+2}, {nbytes}"); A(f"s_mov_b32 s{d+3}, 0x20000")

    A(HEADER.rstrip())
    A(f"; @launch grid=(256,1,1) block=(320,1,1) lds={LDS_BYTES}")
    A('.amdgcn_target "amdgcn-amd-amdhsa--gfx950"')
    A(".text"); A(f".globl {NAME}_kernel"); A(".p2align 8"); A(f".type {NAME}_kernel,@function")
    A(f"{NAME}_kernel:")
    A("s_cmp_ge_u32 s2, 256")
    A("s_cbranch_scc1 L_end")
    A("s_load_dwordx16 s[64:79], s[0:1], 0")
    A("s_load_dwordx8 s[80:87], s[0:1], 64")
    if diag:
        for j in range(1, 8): A(f"s_mov_b64 s[{40+2*j}:{41+2*j}], 0")
    stamp(0)
    if dbgtime: A("s_memrealtime s[40:41]")
    A("v_lshrrev_b32 v1, 6, v0")
    A("v_and_b32 v0, 63, v0")
    A("v_readfirstlane_b32 s3, v1")
    A("s_and_b32 s4, s2, 7"); A("s_lshl_b32 s4, s4, 5"); A("s_lshr_b32 s5, s2, 3"); A("s_add_u32 s4, s4, s5")
    A("s_lshr_b32 s5, s4, 3"); A("s_and_b32 s6, s4, 7")
    A("s_mov_b32 s60, 0xffff0000")
    A(f"s_mov_b32 s61, {f2u(192 ** -0.5):#x}")
    A(f"s_mov_b32 s62, {f2u(1.4426950408889634):#x}")
    A("v_lshrrev_b32 v36, 3, v0")
    A("v_and_b32 v37, 7, v0")
    A("v_lshlrev_b32 v38, 4, v37")
    A("v_and_b32 v39, 1, v0")
    A("v_lshlrev_b32 v39, 4, v39")
    A("v_mov_b32 v34, 0xffff")
    A("v_lshlrev_b32 v39, v39, v34")
    A("v_lshrrev_b32 v35, 1, v37")
    for r in range(4):
        A(f"v_cmp_eq_u32 vcc, {r}, v35")
        nop(1)
        A(f"v_cndmask_b32 v{4+r}, 0, v39, vcc")
    A("s_mov_b32 s36, 0x00ff00ff"); A("s_mov_b32 s37, 0xff00ff00")
    A("s_cmp_eq_u32 s3, 4")
    A("s_cbranch_scc1 L_helper")

    A("v_mul_u32_u24 v1, 384, v36")
    A("v_add_u32 v1, v1, v38")
    A(f"s_mul_i32 s7, s5, {16384*384}")
    A("s_lshl_b32 s38, s6, 2"); A("s_add_u32 s38, s38, s3"); A("s_mul_i32 s38, s38, 3072")
    A("s_add_u32 s7, s7, s38")
    A("s_waitcnt lgkmcnt(0)")
    srd(8, 66, 201326592)
    SC0 = 40
    slots = [56 + 4 * i for i in range(12)] + [104 + 4 * i for i in range(38)]
    early = set(slots[:12])
    free = list(slots)
    NK = 192; NV = 192; NWO = 9
    order = [("K", n) for n in range(NK)] + [("V", n) for n in range(NV)]
    pos = len(order) - wo_early
    order = order[:pos] + [("W", n) for n in range(NWO)] + order[pos:]
    slot_of = {}
    st = dict(I=0)
    def issue():
        kind, n = order[st["I"]]
        r = free.pop(0)
        slot_of[(kind, n)] = r
        if kind in "KV":
            g, it = divmod(n, 3)
            if it == 0 or (st["I"] > 0 and order[st["I"] - 1][0] == "W"):
                A(f"s_add_u32 s39, s7, {g * 98304}")
            s = "s[8:11]" if kind == "K" else "s[12:15]"
            A(f"buffer_load_dwordx4 v[{r}:{r+3}], v1, {s}, s39 offen offset:{128*it} {pol}")
        else:
            e, k = divmod(n, 3)
            vo = "v34" if k < 2 else "v35"
            A(f"buffer_load_dwordx4 v[{r}:{r+3}], {vo}, s[20:23], s{56+e} offen offset:{512*k} {pol}")
        st["I"] += 1
    idx = {o: i for i, o in enumerate(order)}
    landed = [0]
    def wait_for(count):
        if count > landed[0]:
            A(f"s_waitcnt vmcnt({st['I'] - count})")
            landed[0] = count
    if D0 is None: D0 = D
    for i in range(D0): issue()
    srd(12, 68, 201326592)
    srd(16, 86, WS_BYTES)
    srd(20, 72, 6144 * 640 * 2)
    srd(24, 82, 1280)
    A("s_load_dword s63, s[86:87], 0")
    A("s_min_u32 s38, s4, 39"); A("s_lshl_b32 s38, s38, 5"); A("s_lshl_b32 s59, s3, 3"); A("s_add_u32 s38, s38, s59")
    A("s_load_dwordx2 s[88:89], s[64:65], s38")
    A("s_mov_b32 s90, s38")
    A("v_mul_u32_u24 v34, 1280, v36"); A("v_add_u32 v34, v34, v38")
    A("s_lshl_b32 s38, s3, 7"); A("v_add_u32 v34, s38, v34")
    A("s_cmp_ge_u32 s3, 2"); A("s_cselect_b32 s38, 0x40000000, 0"); A("v_add_u32 v35, s38, v34")
    A("s_mul_i32 s56, s4, 30720"); A("s_add_u32 s57, s56, 10240"); A("s_add_u32 s58, s56, 20480")
    A("v_mov_b32 v2, 0xff800000")
    A("v_mov_b32 v3, 0")
    dd = D0
    while st["I"] < N:
        if dd < D and st["I"] >= 8:
            dd += 1
        else:
            wait_for(st["I"] - dd + 1)
        issue()
    A("s_waitcnt lgkmcnt(0)")
    A("s_add_u32 s63, s63, 0x9E3779B9")
    stamp(1)
    A("s_barrier")
    for it in range(3): A(f"ds_read_b128 v[{8+4*it}:{11+4*it}], v38 offset:{L_QBF + 128*it}")
    A("s_waitcnt lgkmcnt(0)")
    stamp(2)

    def prep(g):
        A(f"v_fma_f32 v33, v{SC0+g}, s62, -v2")
        A("v_exp_f32 v33, v33")
        nop(0)
        A("v_add_f32 v3, v3, v33")
        A("v_cvt_pk_bf16_f32 v33, v33, v33")
        for r in range(4): A(f"v_and_b32 v{28+r}, v33, v{4+r}")
    ACC = [8, 12, 16]
    def consume(kind, n):
        r = slot_of[(kind, n)]
        g, it = divmod(n, 3)
        if kind == "K":
            for j in range(4):
                c = "0" if (it == 0 and j == 0) else "v32"
                A(f"v_dot2_f32_bf16 v32, v{r+j}, v{8+4*it+j}, {c}")
            if it == 2:
                nop(2)
                dpp("v_add_f32", 33, 32, 32, "quad_perm:[1,0,3,2]"); nop(1)
                dpp("v_add_f32", 33, 33, 33, "quad_perm:[2,3,0,1]"); nop(1)
                dpp("v_add_f32", 33, 33, 33, "row_half_mirror")
                bfr(33, 33)
                A("v_mul_f32 v33, s61, v33")
                A("v_cvt_pk_bf16_f32 v33, v33, v33")
                A(f"v_and_b32 v{SC0+g}, s60, v33")
                A(f"v_max_f32 v2, v2, v{SC0+g}")
        else:
            c = "0" if g == 0 else f"v[{ACC[it]}:{ACC[it]+3}]"
            A(f"v_mfma_f32_16x16x32_bf16 v[{ACC[it]}:{ACC[it]+3}], v[28:31], v[{r}:{r+3}], {c}")
            if it == 2 and g < 63:
                prep(g + 1)
                if g + 1 == 63:
                    redhi([3], [33], "v_add_f32")
                nop(1)
        if r not in early: free.append(r)
    def transition():
        stamp(3)
        redhi([2], [33], "v_max_f32")
        A("v_mul_f32 v2, s62, v2")
        prep(0)
        nop(1)
    work = [("K", n) for n in range(NK)] + [("T", 0)] + [("V", n) for n in range(NV)]
    wi = 0
    total = len(order)
    while wi < len(work):
        cnt = 0
        while wi < len(work) and cnt < catch:
            k = work[wi]
            if k[0] == "T":
                transition(); wi += 1; cnt = catch; break
            if idx[k] < landed[0]:
                consume(*k); wi += 1; cnt += 1
            else:
                break
        if wi >= len(work): break
        if st["I"] < total:
            wait_for(st["I"] - D + 1)
            issue()
            if all(o[0] == "W" for o in order[st["I"]:]) and idx[("V", NV - 1)] < landed[0] + 1:
                while st["I"] < total: issue()
        else:
            k = work[wi]
            if k[0] != "T": wait_for(idx[k] + 1)
    while st["I"] < total: issue()
    stamp(4)
    A("v_lshrrev_b32 v20, 5, v0"); A("v_mul_u32_u24 v20, 768, v20")
    A("v_lshlrev_b32 v21, 5, v37"); A("v_add_u32 v20, v20, v21")
    A("v_and_b32 v21, 16, v0"); A("v_add_u32 v20, v20, v21")
    A("s_mul_i32 s38, s3, 1536"); A("v_add_u32 v20, s38, v20")
    A("s_lshl_b32 s38, s3, 3"); A("v_mov_b32 v21, s38")
    A(f"ds_write_b64 v21, v[2:3] offset:{L_ML}")
    A("s_mov_b64 exec, s[36:37]")
    for it in range(3): A(f"ds_write_b128 v20, v[{ACC[it]}:{ACC[it]+3}] offset:{L_PART + 256*it}")
    A("s_mov_b64 exec, -1")
    A("v_lshlrev_b32 v22, 7, v37"); A("v_lshlrev_b32 v23, 4, v36"); A("v_add_u32 v22, v22, v23")
    A(f"s_lshl_b32 s91, s4, 10"); A(f"s_add_u32 s91, s91, {OX}")
    A(f"s_lshl_b32 s92, s5, 7"); A(f"s_add_u32 s92, s92, {MX}")
    A("s_waitcnt lgkmcnt(0)")
    A("s_barrier")
    stamp(5)
    A("s_cmp_lg_u32 s3, 0")
    A("s_cbranch_scc1 L_gather1")
    A("v_mov_b32 v21, 0")
    A(f"ds_read_b128 v[40:43], v21 offset:{L_ML}")
    A(f"ds_read_b128 v[44:47], v21 offset:{L_ML+16}")
    A("v_mul_u32_u24 v24, 24, v36"); A("v_add_u32 v24, v24, v37"); A("v_lshlrev_b32 v24, 2, v24")
    A(f"v_add_u32 v24, {L_PART}, v24")
    for w in range(4):
        if w: A(f"v_add_u32 v{24+w}, {1536*w}, v24")
        for e in range(3):
            r = 48 + w * 6 + e * 2
            A(f"ds_read2_b32 v[{r}:{r+1}], v{24+w} offset0:{8*e} offset1:{8*e+192}")
    A("v_lshlrev_b32 v23, 10, v36"); A("v_add_u32 v23, v23, v38")
    A("s_lshl_b32 s38, s5, 13"); A("s_lshl_b32 s39, s6, 7"); A("s_add_u32 s38, s38, s39"); A(f"s_add_u32 s38, s38, {OX}")
    A("s_lshl_b32 s39, s6, 4"); A("s_add_u32 s39, s39, s92")
    A("s_waitcnt lgkmcnt(12)")
    A("v_max3_f32 v72, v40, v42, v44"); A("v_max_f32 v72, v72, v46")
    for w in range(4): A(f"v_sub_f32 v{40+2*w}, v{40+2*w}, v72")
    for w in range(4): A(f"v_exp_f32 v{40+2*w}, v{40+2*w}")
    nop(0)
    A("v_mul_f32 v73, v40, v41")
    for w in range(1, 4): A(f"v_fmac_f32 v73, v{40+2*w}, v{41+2*w}")
    A("v_mov_b32 v74, 0"); A("v_mov_b32 v75, s63"); A("v_mov_b32 v79, s63")
    A("s_waitcnt lgkmcnt(0)")
    for w in range(4):
        for e in range(3):
            r = 48 + w * 6 + e * 2
            A(f"v_add_f32 v{r}, v{r}, v{r+1}")
    for e in range(3): A(f"v_mul_f32 v{76+e}, v40, v{48+e*2}")
    for w in range(1, 4):
        for e in range(3): A(f"v_fmac_f32 v{76+e}, v{40+2*w}, v{48+w*6+e*2}")
    A("buffer_store_dwordx4 v[76:79], v23, s[16:19], s38 offen sc1")
    A("s_mov_b64 exec, 1")
    A("buffer_store_dwordx4 v[72:75], v21, s[16:19], s39 offen sc1")
    A("s_mov_b64 exec, -1")
    A("L_gather1:")
    A("v_lshrrev_b32 v24, 5, v0"); A("v_lshlrev_b32 v24, 2, v24")
    A("v_and_b32 v25, 8, v0")
    A("v_cmp_ne_u32 vcc, 0, v25")
    nop(1)
    A("v_cndmask_b32 v24, v24, v25, vcc")
    A("v_add_u32 v24, s3, v24")
    A("v_lshlrev_b32 v25, 4, v24"); A("v_lshlrev_b32 v26, 1, v37"); A("v_add_u32 v25, v25, v26")
    A("v_bfe_u32 v26, v0, 4, 1"); A("v_add_u32 v25, v25, v26")
    A("v_min_u32 v26, 159, v25"); A("v_lshlrev_b32 v26, 4, v26")
    A(f"ds_read_b128 v[84:87], v26 offset:{L_YF}")
    A(f"ds_read_b128 v[88:91], v26 offset:{L_YF+2560}")
    A("v_lshrrev_b32 v26, 2, v25"); A("v_lshlrev_b32 v26, 14, v26")
    A("v_and_b32 v27, 3, v25"); A("v_lshlrev_b32 v27, 4, v27"); A("v_add_u32 v26, v26, v27")
    A("v_and_b32 v27, 40, v0")
    A("v_cmp_eq_u32 vcc, 40, v27")
    A("v_cmp_lt_u32 s[38:39], 9, v24")
    A("s_or_b64 vcc, vcc, s[38:39]")
    A("v_mov_b32 v27, 0x40000000")
    nop(0)
    A("v_cndmask_b32 v26, v26, v27, vcc")
    A(f"s_lshl_b32 s93, s4, 6"); A(f"s_add_u32 s93, s93, {YX}")
    A("s_and_b32 s94, s63, 0xff"); A("s_mov_b32 s95, 0xffffff00"); A("v_mov_b32 v27, s94")
    A(f"s_mov_b32 s38, {SPIN}")
    A("L_poll1:")
    A("buffer_load_dwordx4 v[40:43], v22, s[16:19], s91 offen sc1")
    A("buffer_load_dwordx4 v[44:47], v38, s[16:19], s92 offen sc1")
    A("s_waitcnt vmcnt(0)")
    A("v_cmp_ne_u32 vcc, s63, v43")
    A("v_cmp_ne_u32 s[96:97], s63, v47")
    A("s_or_b64 vcc, vcc, s[96:97]")
    A("s_cbranch_vccz L_got1")
    A("s_sub_u32 s38, s38, 1")
    A("s_cbranch_scc0 L_poll1")
    A("L_got1:")
    stamp(6)
    A("v_mov_b32 v46, v44")
    red8([46], "v_max_f32")
    A("v_sub_f32 v44, v44, v46")
    A("v_exp_f32 v44, v44")
    nop(0)
    A("v_mul_f32 v43, v44, v45")
    for e in range(3): A(f"v_mul_f32 v{40+e}, v44, v{40+e}")
    nop(0)
    red8([43, 40, 41, 42], "v_add_f32")
    A("v_rcp_f32 v43, v43")
    nop(0)
    for e in range(3): A(f"v_mul_f32 v{40+e}, v43, v{40+e}")
    for e in range(3): A(f"v_cvt_pk_bf16_f32 v{40+e}, v{40+e}, v{40+e}")
    for e in range(3):
        for r in range(4): A(f"v_and_b32 v{48+4*e+r}, v{40+e}, v{4+r}")
    nop(1)
    YA = [60, 64, 68]
    for e in range(3):
        for k in range(3):
            r = slot_of[("W", 3 * e + k)]
            c = "0" if e == 0 else f"v[{YA[k]}:{YA[k]+3}]"
            A(f"v_mfma_f32_16x16x32_bf16 v[{YA[k]}:{YA[k]+3}], v[{48+4*e}:{51+4*e}], v[{r}:{r+3}], {c}")
    A("s_waitcnt lgkmcnt(0)")
    for r in range(4): A(f"v_add_f32 v{84+r}, v{84+r}, v{88+r}")
    nop(2)
    for r in range(4): A(f"v_permlane32_swap_b32 v{60+r}, v{64+r}")
    for r in range(4): A(f"v_mov_b32 v{72+r}, v{68+r}")
    nop(1)
    for r in range(4): A(f"v_permlane32_swap_b32 v{68+r}, v{72+r}")
    for r in range(4): dpp("v_add_f32", 76 + r, 64 + r, 60 + r, "row_ror:8")
    for r in range(4): dpp("v_add_f32", 76 + r, 68 + r, 72 + r, "row_ror:8", bank="0xc")
    for r in range(4): A(f"v_add_f32 v{76+r}, v{76+r}, v{84+r}")
    for r in range(4): A(f"v_and_or_b32 v{76+r}, v{76+r}, s95, v27")
    A("buffer_store_dwordx4 v[76:79], v26, s[16:19], s93 offen sc1")
    A("s_cmp_ge_u32 s4, 40")
    A("s_cbranch_scc1 L_fin")
    A("v_lshlrev_b32 v22, 6, v0")
    A("s_lshl_b32 s91, s4, 14"); A("s_lshl_b32 s38, s3, 4"); A("s_add_u32 s91, s91, s38"); A(f"s_add_u32 s91, s91, {YX}")
    for k in range(1, 4): A(f"s_add_u32 s{91+k}, s91, {4096*k}")
    A("s_and_b32 s39, s63, 0xff")
    A(f"s_mov_b32 s38, {SPIN}")
    A("L_poll2:")
    for k in range(4): A(f"buffer_load_dwordx4 v[{40+4*k}:{43+4*k}], v22, s[16:19], s{91+k} offen sc1")
    A("s_waitcnt vmcnt(0)")
    A("v_or3_b32 v56, v40, v41, v42"); A("v_and_b32 v57, v40, v41"); A("v_and_b32 v57, v57, v42")
    for r in range(43, 55, 2):
        A(f"v_or3_b32 v56, v56, v{r}, v{r+1}"); A(f"v_and_b32 v57, v57, v{r}"); A(f"v_and_b32 v57, v57, v{r+1}")
    A("v_or_b32 v56, v56, v55"); A("v_and_b32 v57, v57, v55")
    A("v_and_b32 v56, 0xff, v56"); A("v_and_b32 v57, 0xff, v57")
    A("v_cmp_ne_u32 vcc, s39, v56")
    A("v_cmp_ne_u32 s[96:97], s39, v57")
    A("s_or_b64 vcc, vcc, s[96:97]")
    A("s_cbranch_vccz L_got2")
    A("s_sub_u32 s38, s38, 1")
    A("s_cbranch_scc0 L_poll2")
    A("L_got2:")
    for r in range(40, 56): A(f"v_and_b32 v{r}, s95, v{r}")
    for r in range(4):
        A(f"v_add_f32 v{40+r}, v{40+r}, v{44+r}"); A(f"v_add_f32 v{48+r}, v{48+r}, v{52+r}")
    for r in range(4): A(f"v_add_f32 v{40+r}, v{40+r}, v{48+r}")
    nop(0)
    red8([40, 41, 42, 43], "v_add_f32")
    redhi([40, 41, 42, 43], [44, 45, 46, 47], "v_add_f32")
    A("s_lshl_b32 s38, s88, 16"); A("s_and_b32 s39, s88, s60"); A("s_lshl_b32 s96, s89, 16"); A("s_and_b32 s97, s89, s60")
    A("v_add_f32 v40, s38, v40"); A("v_add_f32 v41, s39, v41"); A("v_add_f32 v42, s96, v42"); A("v_add_f32 v43, s97, v43")
    A("v_cvt_pk_bf16_f32 v40, v40, v41"); A("v_cvt_pk_bf16_f32 v41, v42, v43")
    A("v_mov_b32 v21, 0"); A("v_mov_b32 v44, s63")
    A("s_mov_b64 exec, 1")
    A("buffer_store_dwordx2 v[40:41], v21, s[24:27], s90 offen")
    A("s_add_u32 s38, s4, s3")
    A("s_cmp_lg_u32 s38, 0")
    A("s_cbranch_scc1 L_noep")
    A("buffer_store_dword v44, v21, s[16:19], 0 offen")
    if dbgtime:
        A("s_memrealtime s[42:43]"); srd(28, 84, 256); A("s_waitcnt lgkmcnt(0)")
        A("s_sub_u32 s42, s42, s40"); A("v_mov_b32 v45, s42"); A("buffer_store_dword v45, v21, s[28:31], 0 offen")
    A("L_noep:")
    A("s_mov_b64 exec, -1")
    A("s_branch L_fin")

    A("L_helper:")
    A("s_setprio 3")
    A("v_lshlrev_b32 v1, 2, v0")
    A("v_mul_u32_u24 v2, 12288, v36"); A("v_add_u32 v2, v2, v38")
    A(f"s_mul_i32 s7, s6, {80*12288}"); A("s_mul_i32 s38, s5, 384"); A("s_add_u32 s7, s7, s38")
    A("s_waitcnt lgkmcnt(0)")
    srd(8, 64, 1280)
    srd(20, 70, 640 * 6144 * 2)
    for k in range(5): A(f"buffer_load_dword v{40+k}, v1, s[8:11], 0 offen offset:{256*k}")
    WQ = 100
    for gq in range(10):
        if gq: A(f"s_add_u32 s7, s7, {8*12288}")
        for it in range(3):
            r = WQ + 12 * gq + 4 * it
            A(f"buffer_load_dwordx4 v[{r}:{r+3}], v2, s[20:23], s7 offen offset:{128*it} {pol}")
    A("s_load_dword s63, s[86:87], 0")
    srd(16, 86, WS_BYTES)
    srd(24, 76, 640 * 1536 * 2); srd(28, 78, 640 * 1536 * 2); srd(32, 80, 1536 * 640 * 2)
    A("s_waitcnt vmcnt(30)")
    for k in range(5):
        A(f"v_lshlrev_b32 v{50+2*k}, 16, v{40+k}"); A(f"v_and_b32 v{51+2*k}, s60, v{40+k}")
    A("v_add_f32 v45, v50, v51")
    for k in range(2, 10): A(f"v_add_f32 v45, v45, v{50+k}")
    red8([45], "v_add_f32"); redhi([45], [46], "v_add_f32")
    A(f"v_mul_f32 v45, {f2u(1/640):#x}, v45")
    A("v_sub_f32 v47, v50, v45"); A("v_mul_f32 v46, v47, v47")
    for k in range(1, 10):
        A(f"v_sub_f32 v47, v{50+k}, v45"); A("v_fmac_f32 v46, v47, v47")
    red8([46], "v_add_f32"); redhi([46], [47], "v_add_f32")
    A(f"v_mul_f32 v46, {f2u(1/640):#x}, v46")
    bfr(45, 45); bfr(46, 46)
    A(f"v_add_f32 v46, {f2u(1e-5):#x}, v46"); bfr(46, 46)
    A("v_sqrt_f32 v46, v46"); nop(0); bfr(46, 46)
    A("v_rcp_f32 v47, v46")
    for k in range(10):
        A(f"v_sub_f32 v{50+k}, v{50+k}, v45"); bfr(50 + k, 50 + k)
    for k in range(10):
        A(f"v_mul_f32 v48, v{50+k}, v47")
        A(f"v_fma_f32 v49, -v48, v46, v{50+k}")
        A(f"v_fma_f32 v{50+k}, v49, v47, v48")
    for k in range(5):
        A(f"v_cvt_pk_bf16_f32 v{40+k}, v{50+2*k}, v{51+2*k}")
        A(f"ds_write_b32 v1, v{40+k} offset:{L_XN + 256*k}")
    A("s_mul_i32 s38, s6, 160"); A("v_lshlrev_b32 v3, 1, v36"); A("v_add_u32 v3, s38, v3")
    for gq in range(10): A(f"ds_read_u16 v{60+gq}, v3 offset:{L_XN + 16*gq}")
    A("v_lshrrev_b32 v20, 5, v0"); A("v_mul_u32_u24 v20, 768, v20")
    A("v_lshlrev_b32 v21, 5, v37"); A("v_add_u32 v20, v20, v21")
    A("v_and_b32 v21, 16, v0"); A("v_add_u32 v20, v20, v21")
    A("v_mul_u32_u24 v21, 12, v0"); A(f"v_add_u32 v21, {L_TMP}, v21")
    A("v_lshlrev_b32 v22, 4, v0")
    A("s_waitcnt lgkmcnt(0)")
    A("s_add_u32 s63, s63, 0x9E3779B9")
    for gq in range(10): A(f"v_lshl_or_b32 v{60+gq}, v{60+gq}, 16, v{60+gq}")
    for gq in range(10):
        sel = 28 if gq % 2 == 0 else 32
        for r in range(4): A(f"v_and_b32 v{sel+r}, v{60+gq}, v{4+r}")
        A(f"s_waitcnt vmcnt({27 - 3*gq})")
        nop(0)
        for it in range(3):
            r = WQ + 12 * gq + 4 * it
            c = "0" if gq == 0 else f"v[{8+4*it}:{11+4*it}]"
            A(f"v_mfma_f32_16x16x32_bf16 v[{8+4*it}:{11+4*it}], v[{sel}:{sel+3}], v[{r}:{r+3}], {c}")
    stamp(1)
    A(f"s_lshl_b32 s38, s4, 10"); A(f"s_add_u32 s38, s38, {QX}")
    A(f"s_lshl_b32 s91, s5, 13"); A(f"s_add_u32 s91, s91, {QX}"); A("s_add_u32 s92, s91, 4096")
    A("v_mov_b32 v43, s63")
    nop(3)
    A("s_mov_b64 exec, s[36:37]")
    for it in range(3): A(f"ds_write_b128 v20, v[{8+4*it}:{11+4*it}] offset:{L_TMP + 256*it}")
    A("s_mov_b64 exec, -1")
    for e in range(3): A(f"ds_read2_b32 v[{44+2*e}:{45+2*e}], v21 offset0:{e} offset1:{e+192}")
    A("s_waitcnt lgkmcnt(0)")
    for e in range(3): A(f"v_add_f32 v{40+e}, v{44+2*e}, v{45+2*e}")
    A("buffer_store_dwordx4 v[40:43], v22, s[16:19], s38 offen sc1")
    stamp(2)
    A(f"s_mov_b32 s38, {SPIN}")
    A("L_pollq:")
    for p in range(8):
        A(f"buffer_load_dwordx4 v[{100+4*p}:{103+4*p}], v22, s[16:19], s{91 + p//4} offen offset:{1024*(p%4)} sc1")
    A("s_waitcnt vmcnt(0)")
    A("v_xor_b32 v44, s63, v103")
    for p in range(1, 8):
        A(f"v_xor_b32 v45, s63, v{103+4*p}"); A("v_or_b32 v44, v44, v45")
    A("v_cmp_ne_u32 vcc, 0, v44")
    A("s_cbranch_vccz L_gotq")
    A("s_sub_u32 s38, s38, 1")
    A("s_cbranch_scc0 L_pollq")
    A("L_gotq:")
    stamp(3)
    for p in range(1, 8):
        for e in range(3): A(f"v_add_f32 v{100+e}, v{100+e}, v{100+4*p+e}")
    A("v_cvt_pk_bf16_f32 v44, v100, v101"); A("v_cvt_pk_bf16_f32 v45, v102, v102")
    A("v_mul_u32_u24 v23, 6, v0")
    A(f"ds_write_b16 v23, v44 offset:{L_QBF}")
    A(f"ds_write_b16_d16_hi v23, v44 offset:{L_QBF+2}")
    A(f"ds_write_b16 v23, v45 offset:{L_QBF+4}")
    A("s_waitcnt lgkmcnt(0)")
    A("s_barrier")
    A("s_setprio 0")
    stamp(4)
    A("v_mul_u32_u24 v2, 3072, v36"); A("v_add_u32 v2, v2, v38")
    A("v_mov_b32 v24, 0x40000000")
    A("v_cmp_lt_u32 vcc, 5, v37"); nop(1)
    A("v_cndmask_b32 v2, v2, v24, vcc")
    A(f"s_mul_i32 s7, s6, {80*3072}"); A("s_mul_i32 s38, s5, 96"); A("s_add_u32 s7, s7, s38")
    FD = 4
    def fissue(gq):
        if gq: A(f"s_add_u32 s7, s7, {8*3072}")
        A(f"buffer_load_dwordx4 v[{100+8*gq}:{103+8*gq}], v2, s[24:27], s7 offen {pol}")
        A(f"buffer_load_dwordx4 v[{104+8*gq}:{107+8*gq}], v2, s[28:31], s7 offen {pol}")
    for gq in range(FD): fissue(gq)
    for gq in range(10):
        sel = 28 if gq % 2 == 0 else 32
        for r in range(4): A(f"v_and_b32 v{sel+r}, v{60+gq}, v{4+r}")
        nis = min(gq + FD, 10)
        A(f"s_waitcnt vmcnt({2*(nis - gq - 1)})")
        if gq + FD < 10: fissue(gq + FD)
        else: nop(0)
        for m in range(2):
            r = 100 + 8 * gq + 4 * m
            c = "0" if gq == 0 else f"v[{8+4*m}:{11+4*m}]"
            A(f"v_mfma_f32_16x16x32_bf16 v[{8+4*m}:{11+4*m}], v[{sel}:{sel+3}], v[{r}:{r+3}], {c}")
    A("v_mul_u32_u24 v2, 1280, v36"); A("v_add_u32 v2, v2, v38")
    A("v_cmp_lt_u32 vcc, 5, v36"); nop(1)
    A("v_cndmask_b32 v2, v2, v24, vcc")
    A(f"s_mul_i32 s7, s4, {6*1280}")
    for lc in range(10):
        A(f"buffer_load_dwordx4 v[{200+4*lc}:{203+4*lc}], v2, s[32:35], s7 offen offset:{128*lc} {pol}")
    A("s_mov_b64 exec, s[36:37]")
    for m in range(2): A(f"ds_write_b128 v20, v[{8+4*m}:{11+4*m}] offset:{L_TMP + 256*m}")
    A("s_mov_b64 exec, -1")
    A("v_mul_u32_u24 v21, 6, v36"); A("v_add_u32 v21, v21, v37"); A("v_lshlrev_b32 v21, 2, v21"); A(f"v_add_u32 v21, {L_TMP}, v21")
    A("v_add_u32 v23, 256, v21")
    A("ds_read2_b32 v[44:45], v21 offset0:0 offset1:192")
    A("ds_read2_b32 v[46:47], v23 offset0:0 offset1:192")
    A("v_lshlrev_b32 v23, 10, v36"); A("v_add_u32 v23, v23, v38")
    A("s_lshl_b32 s38, s5, 13"); A("s_lshl_b32 s39, s6, 7"); A("s_add_u32 s38, s38, s39"); A(f"s_add_u32 s38, s38, {FX}")
    A("v_cmp_gt_u32 vcc, 6, v37")
    A("s_waitcnt lgkmcnt(0)")
    A("v_add_f32 v40, v44, v45"); A("v_add_f32 v41, v46, v47")
    A("v_cndmask_b32 v40, 0, v40, vcc"); A("v_cndmask_b32 v41, 0, v41, vcc")
    A("v_mov_b32 v42, 0")
    A("buffer_store_dwordx4 v[40:43], v23, s[16:19], s38 offen sc1")
    A("v_lshlrev_b32 v22, 7, v37"); A("v_lshlrev_b32 v25, 4, v36"); A("v_add_u32 v22, v22, v25")
    A(f"s_lshl_b32 s91, s4, 10"); A(f"s_add_u32 s91, s91, {FX}")
    A(f"s_mov_b32 s38, {SPIN}")
    A("L_pollf:")
    A("buffer_load_dwordx4 v[44:47], v22, s[16:19], s91 offen sc1")
    A("s_waitcnt vmcnt(0)")
    A("v_cmp_ne_u32 vcc, s63, v47")
    A("s_cbranch_vccz L_gotf")
    A("s_sleep 8")
    A("s_sub_u32 s38, s38, 1")
    A("s_cbranch_scc0 L_pollf")
    A("L_gotf:")
    red8([44, 45], "v_add_f32")
    bfr(44, 44); bfr(45, 45)
    A("v_max_f32 v44, 0, v44")
    A("v_mul_f32 v44, v44, v45")
    A("v_cvt_pk_bf16_f32 v44, v44, v44")
    for r in range(4): A(f"v_and_b32 v{28+r}, v44, v{4+r}")
    nop(1)
    for lc in range(10):
        A(f"v_mfma_f32_16x16x32_bf16 v[{100+4*lc}:{103+4*lc}], v[28:31], v[{200+4*lc}:{203+4*lc}], 0")
    A("v_lshrrev_b32 v20, 5, v0"); A("v_mul_u32_u24 v20, 2560, v20")
    A("v_lshlrev_b32 v21, 5, v37"); A("v_add_u32 v20, v20, v21")
    A("v_and_b32 v21, 16, v0"); A("v_add_u32 v20, v20, v21")
    nop(3)
    A("s_mov_b64 exec, s[36:37]")
    for lc in range(10): A(f"ds_write_b128 v20, v[{100+4*lc}:{103+4*lc}] offset:{L_YF + 256*lc}")
    A("s_mov_b64 exec, -1")
    A("s_waitcnt lgkmcnt(0)")
    stamp(5)
    A("s_barrier")

    A("L_fin:")
    if diag:
        stamp(7)
        A("s_waitcnt lgkmcnt(0)")
        A("s_mul_i32 s38, s2, 5"); A("s_add_u32 s38, s38, s3"); A("s_lshl_b32 s38, s38, 6"); A(f"s_add_u32 s38, s38, {700<<20}")
        A("v_mov_b32 v6, 0")
        for j in range(8):
            A(f"v_mov_b32 v2, s{40+2*j}"); A(f"v_mov_b32 v3, s{41+2*j}")
            A(f"buffer_store_dwordx2 v[2:3], v6, s[16:19], s38 offen offset:{8*j}")
            nop(1)
    A("L_end:")
    A("s_endpgm")
    A('.section .rodata,"a"'); A(".p2align 6")
    A(f".amdhsa_kernel {NAME}_kernel")
    A("  .amdhsa_next_free_vgpr 256"); A("  .amdhsa_next_free_sgpr 102"); A("  .amdhsa_accum_offset 256")
    A("  .amdhsa_group_segment_fixed_size 0"); A("  .amdhsa_kernarg_size 96"); A("  .amdhsa_user_sgpr_count 2")
    A("  .amdhsa_user_sgpr_kernarg_segment_ptr 1"); A("  .amdhsa_system_sgpr_workgroup_id_x 1")
    A(".end_amdhsa_kernel")
    return "\n".join(L) + "\n"

if __name__ == "__main__":
    import ast
    out = sys.argv[1]
    kw = {}
    for a in sys.argv[2:]:
        k, v = a.split("=")
        try: v = ast.literal_eval(v)
        except Exception: pass
        kw[k] = v
    open(out, "w").write(gen(**kw))
```

```python
import sys, struct
NAME = "parallel_sum__gqa_block_cached__glu_gated_reglu__decode"

def f2u(x):
    return struct.unpack("<I", struct.pack("<f", x))[0]

HEADER = """; Kernarg layout for this problem (96 bytes, ptrs only, base s[0:1]):
"""

QX, FX, OX, MX, YX = 0x10000, 0x50000, 0x90000, 0xD0000, 0x100000
WS_BYTES = 805306368
L_XN, L_TMP, L_QBF, L_YF, L_PART, L_ML = 0, 1280, 2816, 3200, 8320, 14464
L_IN, L_RED = 14592, 15616
LDS_BYTES = 15872
SPIN = 1 << 20

def gen(D=6, N=40, catch=3, diag=False, pol="nt", wo_early=0, D0=None, dbgtime=False, calib=0, x_nowq=False, x_nopollq=False, x_noffn=False, wqd=30, es=False, x_nohelper=False, hprio=3, warm=0, xq=4, np1=2, sl1=6, np2=1, sl2=16, thr2=24, FD=4, D2=None, sw=0, slq=4):
    L = []
    A = L.append
    def nop(n): A(f"s_nop {n}")
    def stamp(j, early=False):
        if es and inS[0] and j in (3, 5, 6) and not early: return
        if diag: A(f"s_memrealtime s[{40+2*j}:{41+2*j}]")
    inS = [True]
    def dpp(op, dst, src_dpp, src1, ctl, bank="0xf"):
        A(f"{op}_dpp v{dst}, v{src_dpp}, v{src1} {ctl} row_mask:0xf bank_mask:{bank}")
    def red8(regs, op):
        for ctl in ["quad_perm:[1,0,3,2]", "quad_perm:[2,3,0,1]", "row_half_mirror"]:
            if len(regs) < 3: nop(2 - len(regs) + 0) if len(regs) == 1 else nop(0)
            for r in regs: dpp(op, r, r, r, ctl)
    def redhi(regs, tmps, op, first="row_ror:8"):
        if len(regs) < 3: nop(1) if len(regs) == 1 else nop(0)
        for r in regs: dpp(op, r, r, r, first)
        for sw in ["v_permlane16_swap_b32", "v_permlane32_swap_b32"]:
            for r, t in zip(regs, tmps): A(f"v_mov_b32 v{t}, v{r}")
            nop(1)
            for r, t in zip(regs, tmps): A(f"{sw} v{t}, v{r}")
            for r, t in zip(regs, tmps): A(f"{op} v{r}, v{t}, v{r}")
    def bfr(dst, src):
        A(f"v_cvt_pk_bf16_f32 v{dst}, v{src}, v{src}")
        A(f"v_and_b32 v{dst}, s60, v{dst}")
    def tagword(dst, r):
        A(f"v_perm_b32 v{dst}, v{r+1}, v{r}, s100")
        A(f"v_perm_b32 v{dst}, v{r+2}, v{dst}, s101")
        A(f"v_perm_b32 v{dst}, v{r+3}, v{dst}, s59")
    def srd(d, p, nbytes):
        A(f"s_mov_b32 s{d}, s{p}"); A(f"s_mov_b32 s{d+1}, s{p+1}")
        A(f"s_mov_b32 s{d+2}, {nbytes}"); A(f"s_mov_b32 s{d+3}, 0x20000")

    A(HEADER.rstrip())
    A(f"; @launch grid=(256,1,1) block=(320,1,1) lds={LDS_BYTES}")
    A('.amdgcn_target "amdgcn-amd-amdhsa--gfx950"')
    A(".text"); A(f".globl {NAME}_kernel"); A(".p2align 8"); A(f".type {NAME}_kernel,@function")
    A(f"{NAME}_kernel:")
    A("s_cmp_ge_u32 s2, 256")
    A("s_cbranch_scc1 L_end")
    A("s_load_dwordx16 s[64:79], s[0:1], 0")
    A("s_load_dwordx8 s[80:87], s[0:1], 64")
    if diag:
        for j in range(1, 8): A(f"s_mov_b64 s[{40+2*j}:{41+2*j}], 0")
    stamp(0)
    if dbgtime: A("s_memrealtime s[40:41]")
    A("v_lshrrev_b32 v1, 6, v0")
    A("v_and_b32 v0, 63, v0")
    A("v_readfirstlane_b32 s3, v1")
    A("s_and_b32 s4, s2, 7"); A("s_lshl_b32 s4, s4, 5"); A("s_lshr_b32 s5, s2, 3"); A("s_add_u32 s4, s4, s5")
    A("s_lshr_b32 s5, s4, 3"); A("s_and_b32 s6, s4, 7")
    A("s_mov_b32 s60, 0xffff0000")
    A(f"s_mov_b32 s61, {f2u(192 ** -0.5):#x}")
    A(f"s_mov_b32 s62, {f2u(1.4426950408889634):#x}")
    A("v_lshrrev_b32 v36, 3, v0")
    A("v_and_b32 v37, 7, v0")
    A("v_lshlrev_b32 v38, 4, v37")
    A("v_and_b32 v39, 1, v0")
    A("v_lshlrev_b32 v39, 4, v39")
    A("v_mov_b32 v34, 0xffff")
    A("v_lshlrev_b32 v39, v39, v34")
    A("v_lshrrev_b32 v35, 1, v37")
    for r in range(4):
        A(f"v_cmp_eq_u32 vcc, {r}, v35")
        nop(1)
        A(f"v_cndmask_b32 v{4+r}, 0, v39, vcc")
    A("s_mov_b32 s36, 0x00ff00ff"); A("s_mov_b32 s37, 0xff00ff00")
    A("s_cmp_eq_u32 s3, 4")
    A("s_cbranch_scc1 L_helper")

    A("v_mul_u32_u24 v1, 384, v36")
    A("v_add_u32 v1, v1, v38")
    A(f"s_mul_i32 s7, s5, {16384*384}")
    A("s_lshl_b32 s38, s6, 2"); A("s_add_u32 s38, s38, s3"); A("s_mul_i32 s38, s38, 3072")
    A("s_add_u32 s7, s7, s38")
    A("s_waitcnt lgkmcnt(0)")
    srd(8, 66, 201326592)
    SC0 = 40
    slots = [56 + 4 * i for i in range(12)] + [104 + 4 * i for i in range(38)]
    early = set(slots[:12])
    free = list(slots)
    NK = 192; NV = 192; NWO = 9
    order = [("K", n) for n in range(NK)] + [("V", n) for n in range(NV)]
    pos = len(order) - wo_early
    order = order[:pos] + [("W", n) for n in range(NWO)] + order[pos:]
    slot_of = {}
    st = dict(I=0)
    def issue():
        kind, n = order[st["I"]]
        r = free.pop(0)
        slot_of[(kind, n)] = r
        if kind in "KV":
            g, it = divmod(n, 3)
            if it == 0 or (st["I"] > 0 and order[st["I"] - 1][0] == "W"):
                A(f"s_add_u32 s39, s7, {g * 98304}")
            s = "s[8:11]" if kind == "K" else "s[12:15]"
            A(f"buffer_load_dwordx4 v[{r}:{r+3}], v1, {s}, s39 offen offset:{128*it} {pol}")
        else:
            e, k = divmod(n, 3)
            vo = "v34" if k < 2 else "v35"
            A(f"buffer_load_dwordx4 v[{r}:{r+3}], {vo}, s[20:23], s{56+e} offen offset:{512*k} {pol}")
        st["I"] += 1
    idx = {o: i for i, o in enumerate(order)}
    landed = [0]
    def wait_for(count):
        if count > landed[0]:
            A(f"s_waitcnt vmcnt({st['I'] - count})")
            landed[0] = count
    if D0 is None: D0 = D
    for i in range(D0): issue()
    srd(12, 68, 201326592)
    srd(16, 86, WS_BYTES)
    srd(20, 72, 6144 * 640 * 2)
    srd(24, 82, 1280)
    A("s_load_dword s63, s[86:87], 0")
    A("s_min_u32 s38, s2, 39"); A("s_lshl_b32 s90, s38, 5")
    A("v_lshrrev_b32 v20, 5, v0"); A("v_mul_u32_u24 v20, 768, v20")
    A("v_lshlrev_b32 v21, 5, v37"); A("v_add_u32 v20, v20, v21")
    A("v_and_b32 v21, 16, v0"); A("v_add_u32 v20, v20, v21")
    A("s_mul_i32 s38, s3, 1536"); A("v_add_u32 v20, s38, v20")
    A("s_lshl_b32 s38, s3, 3"); A("v_mov_b32 v21, s38")
    A("v_lshlrev_b32 v22, 7, v37"); A("v_lshlrev_b32 v23, 4, v36"); A("v_add_u32 v22, v22, v23")
    A(f"s_lshl_b32 s91, s4, 10"); A(f"s_add_u32 s91, s91, {OX}")
    A("v_lshlrev_b32 v23, 10, v36"); A("v_add_u32 v23, v23, v38")
    A("s_lshl_b32 s92, s5, 13"); A("s_lshl_b32 s38, s6, 7"); A("s_add_u32 s92, s92, s38"); A(f"s_add_u32 s92, s92, {OX}")
    A("v_cmp_ne_u32 s[98:99], s6, v36")
    A("v_lshrrev_b32 v24, 5, v0"); A("v_lshlrev_b32 v24, 2, v24")
    A("v_and_b32 v25, 8, v0")
    A("v_cmp_ne_u32 vcc, 0, v25")
    nop(1)
    A("v_cndmask_b32 v24, v24, v25, vcc")
    A("v_add_u32 v24, s3, v24")
    A("v_lshlrev_b32 v25, 4, v24"); A("v_lshlrev_b32 v26, 1, v37"); A("v_add_u32 v25, v25, v26")
    A("v_bfe_u32 v26, v0, 4, 1"); A("v_add_u32 v25, v25, v26")
    A("v_lshrrev_b32 v26, 2, v25"); A("v_lshlrev_b32 v26, 14, v26")
    A("v_and_b32 v27, 3, v25"); A("v_lshlrev_b32 v27, 4, v27"); A("v_add_u32 v26, v26, v27")
    A("v_min_u32 v25, 159, v25"); A("v_lshlrev_b32 v25, 4, v25")
    A("v_and_b32 v27, 40, v0")
    A("v_cmp_eq_u32 vcc, 40, v27")
    A("v_cmp_lt_u32 s[96:97], 9, v24")
    A("s_or_b64 vcc, vcc, s[96:97]")
    A("v_mov_b32 v27, 0x40000000")
    nop(0)
    A("v_cndmask_b32 v26, v26, v27, vcc")
    A(f"s_lshl_b32 s93, s4, 6"); A(f"s_add_u32 s93, s93, {YX}")
    A("v_mul_u32_u24 v24, 24, v36"); A("v_add_u32 v24, v24, v37"); A("v_lshlrev_b32 v24, 2, v24")
    A(f"v_add_u32 v24, {L_PART}, v24")
    A("v_lshlrev_b32 v39, 4, v0")
    A("s_mov_b32 s95, 0xffffff00"); A("s_mov_b32 s100, 0x0c0c0400"); A("s_mov_b32 s101, 0x0c040100"); A("s_mov_b32 s59, 0x04020100")
    A("v_mul_u32_u24 v34, 1280, v36"); A("v_add_u32 v34, v34, v38")
    A("s_lshl_b32 s38, s3, 7"); A("v_add_u32 v34, s38, v34")
    A("s_cmp_ge_u32 s3, 2"); A("s_cselect_b32 s38, 0x40000000, 0"); A("v_add_u32 v35, s38, v34")
    A("s_mul_i32 s56, s4, 30720"); A("s_add_u32 s57, s56, 10240"); A("s_add_u32 s58, s56, 20480")
    A("v_mov_b32 v2, 0xff800000")
    A("v_mov_b32 v3, 0")
    dd = D0
    while st["I"] < N:
        if dd < D and st["I"] >= 8:
            dd += 1
        else:
            wait_for(st["I"] - dd + 1)
            if es and landed[0] in (1, 11, 23): stamp({1: 3, 11: 5, 23: 6}[landed[0]], True)
        issue()
    A("s_waitcnt lgkmcnt(0)")
    A("s_add_u32 s63, s63, 0x9E3779B9")
    A("s_and_b32 s94, s63, 0xff"); A("v_mov_b32 v27, s94"); A("s_mul_i32 s94, s94, 0x01010101")
    stamp(1)
    A("s_barrier")
    for it in range(3): A(f"ds_read_b128 v[{8+4*it}:{11+4*it}], v38 offset:{L_QBF + 128*it}")
    A("s_waitcnt lgkmcnt(0)")
    stamp(2)

    def prep(g):
        A(f"v_fma_f32 v33, v{SC0+g}, s62, -v2")
        A("v_exp_f32 v33, v33")
        nop(0)
        A("v_add_f32 v3, v3, v33")
        A("v_cvt_pk_bf16_f32 v33, v33, v33")
        for r in range(4): A(f"v_and_b32 v{28+r}, v33, v{4+r}")
    ACC = [8, 12, 16]
    def consume(kind, n):
        r = slot_of[(kind, n)]
        g, it = divmod(n, 3)
        if kind == "K":
            for j in range(4):
                c = "0" if (it == 0 and j == 0) else "v32"
                A(f"v_dot2_f32_bf16 v32, v{r+j}, v{8+4*it+j}, {c}")
            if it == 2:
                nop(2)
                dpp("v_add_f32", 33, 32, 32, "quad_perm:[1,0,3,2]"); nop(1)
                dpp("v_add_f32", 33, 33, 33, "quad_perm:[2,3,0,1]"); nop(1)
                dpp("v_add_f32", 33, 33, 33, "row_half_mirror")
                bfr(33, 33)
                A("v_mul_f32 v33, s61, v33")
                A("v_cvt_pk_bf16_f32 v33, v33, v33")
                A(f"v_and_b32 v{SC0+g}, s60, v33")
                A(f"v_max_f32 v2, v2, v{SC0+g}")
        else:
            c = "0" if g == 0 else f"v[{ACC[it]}:{ACC[it]+3}]"
            A(f"v_mfma_f32_16x16x32_bf16 v[{ACC[it]}:{ACC[it]+3}], v[28:31], v[{r}:{r+3}], {c}")
            if it == 2 and g < 63:
                prep(g + 1)
                if g + 1 == 63:
                    redhi([3], [33], "v_add_f32")
                nop(1)
        if r not in early: free.append(r)
    def transition():
        stamp(3)
        redhi([2], [33], "v_max_f32")
        A("v_mul_f32 v2, s62, v2")
        prep(0)
        nop(1)
    work = [("K", n) for n in range(NK)] + [("T", 0)] + [("V", n) for n in range(NV)]
    wi = 0
    total = len(order)
    while wi < len(work):
        cnt = 0
        while wi < len(work) and cnt < catch:
            k = work[wi]
            if k[0] == "T":
                transition(); wi += 1; cnt = catch; break
            if idx[k] < landed[0]:
                consume(*k); wi += 1; cnt += 1
            else:
                break
        if wi >= len(work): break
        if st["I"] < total:
            dcur = D2 if (D2 and st["I"] >= total - NWO - sw) else D
            wait_for(st["I"] - dcur + 1)
            issue()
            if st["I"] < total and st["I"] - landed[0] < dcur: issue()
            if all(o[0] == "W" for o in order[st["I"]:]) and idx[("V", NV - 1)] < landed[0] + 1:
                while st["I"] < total: issue()
        else:
            k = work[wi]
            if k[0] != "T": wait_for(idx[k] + 1)
    while st["I"] < total: issue()
    stamp(4)
    A(f"ds_write_b64 v21, v[2:3] offset:{L_ML}")
    A("s_mov_b64 exec, s[36:37]")
    nop(5)
    for it in range(3): A(f"ds_write_b128 v20, v[{ACC[it]}:{ACC[it]+3}] offset:{L_PART + 256*it}")
    A("s_mov_b64 exec, -1")
    A("s_waitcnt lgkmcnt(0)")
    A("s_barrier")
    stamp(5)
    A(f"ds_read_b128 v[84:87], v25 offset:{L_YF}")
    A(f"ds_read_b128 v[88:91], v25 offset:{L_YF+2560}")
    A("s_cmp_eq_u32 s3, 1")
    A("s_cbranch_scc1 L_poller1")
    A("s_cmp_lg_u32 s3, 0")
    A("s_cbranch_scc1 L_b3")
    A(f"ds_read_b128 v[40:43], v21 offset:{L_ML}")
    A(f"ds_read_b128 v[44:47], v21 offset:{L_ML+16}")
    for w in range(4):
        if w: A(f"v_add_u32 v{92+w}, {1536*w}, v24")
        for e in range(3):
            r = 48 + w * 6 + e * 2
            A(f"ds_read2_b32 v[{r}:{r+1}], v{92+w if w else 24} offset0:{8*e} offset1:{8*e+192}")
    A("s_waitcnt lgkmcnt(12)")
    A("v_max3_f32 v72, v40, v42, v44"); A("v_max_f32 v72, v72, v46")
    A("v_and_b32 v72, s95, v72")
    for w in range(4): A(f"v_sub_f32 v{40+2*w}, v{40+2*w}, v72")
    for w in range(4): A(f"v_exp_f32 v{40+2*w}, v{40+2*w}")
    A("s_mov_b32 vcc_lo, 0xaaaaaaaa"); A("s_mov_b32 vcc_hi, 0xaaaaaaaa")
    A("v_mul_f32 v73, v40, v41")
    for w in range(1, 4): A(f"v_fmac_f32 v73, v{40+2*w}, v{41+2*w}")
    A("v_cndmask_b32 v79, v72, v73, vcc")
    A("s_waitcnt lgkmcnt(0)")
    for w in range(4):
        for e in range(3):
            r = 48 + w * 6 + e * 2
            A(f"v_add_f32 v{r}, v{r}, v{r+1}")
    for e in range(3): A(f"v_mul_f32 v{76+e}, v40, v{48+e*2}")
    for w in range(1, 4):
        for e in range(3): A(f"v_fmac_f32 v{76+e}, v{40+2*w}, v{48+w*6+e*2}")
    for r in range(4): A(f"v_and_or_b32 v{76+r}, v{76+r}, s95, v27")
    A("s_mov_b64 exec, s[98:99]")
    A("buffer_store_dwordx4 v[76:79], v23, s[16:19], s92 offen sc1")
    A("s_not_b64 exec, exec")
    A(f"ds_write_b128 v22, v[76:79] offset:{L_IN}")
    A("s_mov_b64 exec, -1")
    A("s_branch L_b3")
    A("L_poller1:")
    A("v_cmp_ne_u32 vcc, s6, v37")
    A("s_mov_b64 exec, vcc")
    A(f"s_mov_b32 s38, {SPIN}")
    for k in range(np1):
        if k: A(f"s_sleep {sl1}")
        A(f"buffer_load_dwordx4 v[{40+4*k}:{43+4*k}], v22, s[16:19], s91 offen sc1")
    A("L_poll1:")
    for k in range(np1):
        r = 40 + 4 * k
        A(f"s_waitcnt vmcnt({np1-1})")
        tagword(60, r)
        A("v_cmp_eq_u32 vcc, s94, v60")
        A("s_andn2_b64 s[96:97], exec, vcc")
        A("s_mov_b64 exec, vcc")
        A(f"ds_write_b128 v39, v[{r}:{r+3}] offset:{L_IN}")
        A("s_mov_b64 exec, s[96:97]")
        A("s_cbranch_execz L_got1")
        if np1 == 1 and sl1: A(f"s_sleep {sl1}")
        A("s_waitcnt lgkmcnt(0)")
        A(f"buffer_load_dwordx4 v[{r}:{r+3}], v22, s[16:19], s91 offen sc1")
    A("s_sub_u32 s38, s38, 1")
    A("s_cbranch_scc0 L_poll1")
    A("L_got1:")
    A("s_mov_b64 exec, -1")
    A("L_b3:")
    A("s_waitcnt lgkmcnt(0)")
    A("s_barrier")
    A(f"ds_read_b128 v[92:95], v39 offset:{L_IN}")
    for r in range(4): A(f"v_add_f32 v{84+r}, v{84+r}, v{88+r}")
    stamp(6)
    A("s_waitcnt lgkmcnt(0)")
    A("v_and_b32 v95, s95, v95")
    for e in range(3): A(f"v_and_b32 v{92+e}, s95, v{92+e}")
    A("v_mov_b32 v96, v95"); A("v_mov_b32 v97, v95")
    nop(0)
    A("v_mov_b32_dpp v96, v95 row_ror:8 row_mask:0xf bank_mask:0xc")
    A("v_mov_b32_dpp v97, v95 row_ror:8 row_mask:0xf bank_mask:0x3")
    A("v_mov_b32 v98, v96")
    red8([98], "v_max_f32")
    A("v_sub_f32 v96, v96, v98")
    A("v_exp_f32 v96, v96")
    nop(0)
    A("v_mul_f32 v95, v96, v97")
    for e in range(3): A(f"v_mul_f32 v{92+e}, v96, v{92+e}")
    nop(0)
    red8([95, 92, 93, 94], "v_add_f32")
    A("v_rcp_f32 v95, v95")
    nop(0)
    for e in range(3): A(f"v_mul_f32 v{92+e}, v95, v{92+e}")
    for e in range(3): A(f"v_cvt_pk_bf16_f32 v{92+e}, v{92+e}, v{92+e}")
    for e in range(3):
        for r in range(4): A(f"v_and_b32 v{8+4*e+r}, v{92+e}, v{4+r}")
    if wo_early < D + 12:
        A("s_cmp_eq_u32 s3, 0"); A("s_cbranch_scc1 L_wo0"); A("s_cmp_eq_u32 s3, 1"); A("s_cbranch_scc1 L_wo1")
        A("s_waitcnt vmcnt(0)"); A("L_wo0:"); A("s_waitcnt vmcnt(1)"); A("L_wo1:")
    else: nop(1)
    YA = [60, 64, 68]
    for e in range(3):
        for k in range(3):
            r = slot_of[("W", 3 * e + k)]
            c = "0" if e == 0 else f"v[{YA[k]}:{YA[k]+3}]"
            A(f"v_mfma_f32_16x16x32_bf16 v[{YA[k]}:{YA[k]+3}], v[{8+4*e}:{11+4*e}], v[{r}:{r+3}], {c}")
    nop(7)
    for r in range(4): A(f"v_permlane32_swap_b32 v{60+r}, v{64+r}")
    for r in range(4): A(f"v_mov_b32 v{72+r}, v{68+r}")
    nop(1)
    for r in range(4): A(f"v_permlane32_swap_b32 v{68+r}, v{72+r}")
    for r in range(4): dpp("v_add_f32", 76 + r, 64 + r, 60 + r, "row_ror:8")
    for r in range(4): dpp("v_add_f32", 76 + r, 68 + r, 72 + r, "row_ror:8", bank="0xc")
    for r in range(4): A(f"v_add_f32 v{76+r}, v{76+r}, v{84+r}")
    for r in range(4): A(f"v_and_or_b32 v{76+r}, v{76+r}, s95, v27")
    A("buffer_store_dwordx4 v[76:79], v26, s[16:19], s93 offen sc1")
    A("s_cmp_ge_u32 s2, 40")
    A("s_cbranch_scc1 L_fin")
    A("s_lshl_b32 s91, s2, 14"); A("s_lshl_b32 s38, s3, 12"); A("s_add_u32 s91, s91, s38"); A(f"s_add_u32 s91, s91, {YX}")
    srd(8, 64, 1280)
    A("v_lshlrev_b32 v61, 3, v0")
    A("buffer_load_dwordx2 v[100:101], v61, s[8:11], s90 offen")
    for k in range(4): A(f"s_mov_b64 s[{28+2*k}:{29+2*k}], -1")
    A(f"s_mov_b32 s38, {SPIN}")
    A("s_waitcnt vmcnt(0)")
    A("L_poll2:")
    for k in range(4):
        A(f"s_mov_b64 exec, s[{28+2*k}:{29+2*k}]")
        A(f"buffer_load_dwordx4 v[{40+4*k}:{43+4*k}], v39, s[16:19], s91 offen offset:{1024*k} sc1")
    A("s_mov_b64 exec, -1")
    for k in range(4):
        A(f"s_waitcnt vmcnt({3-k})")
        tagword(56 + k, 40 + 4 * k)
        A(f"v_cmp_ne_u32 s[{28+2*k}:{29+2*k}], s94, v{56+k}")
    A("s_or_b64 s[96:97], s[28:29], s[30:31]"); A("s_or_b64 vcc, s[32:33], s[34:35]"); A("s_or_b64 vcc, vcc, s[96:97]")
    A("s_cbranch_scc0 L_got2")
    if sl2:
        A("s_bcnt1_i32_b64 s39, vcc"); A(f"s_cmp_lt_u32 s39, {thr2}"); A("s_cbranch_scc1 L_nosl2"); A(f"s_sleep {sl2}"); A("L_nosl2:")
    A("s_sub_u32 s38, s38, 1")
    A("s_cbranch_scc0 L_poll2")
    A("L_got2:")
    for r in range(40, 56): A(f"v_and_b32 v{r}, s95, v{r}")
    for r in range(4):
        A(f"v_add_f32 v{40+r}, v{40+r}, v{44+r}"); A(f"v_add_f32 v{48+r}, v{48+r}, v{52+r}")
    for r in range(4): A(f"v_add_f32 v{40+r}, v{40+r}, v{48+r}")
    for r in range(4): dpp("v_add_f32", 40 + r, 40 + r, 40 + r, "row_ror:4")
    redhi([40, 41, 42, 43], [44, 45, 46, 47], "v_add_f32")
    A("s_lshl_b32 s38, s3, 6"); A("v_add_u32 v44, s38, v39")
    A("s_mov_b64 exec, 15")
    A(f"ds_write_b128 v44, v[40:43] offset:{L_RED}")
    A("s_waitcnt lgkmcnt(0)")
    A("s_barrier")
    A("s_cmp_lg_u32 s3, 0")
    A("s_cbranch_scc1 L_noep")
    for k in range(1, 4): A(f"ds_read_b128 v[{40+4*k}:{43+4*k}], v39 offset:{L_RED + 64*k}")
    A("v_lshlrev_b32 v56, 16, v100"); A("v_and_b32 v57, s60, v100"); A("v_lshlrev_b32 v58, 16, v101"); A("v_and_b32 v59, s60, v101")
    A("v_mov_b32 v62, s63")
    A("s_waitcnt lgkmcnt(0)")
    for r in range(4):
        A(f"v_add_f32 v{40+r}, v{40+r}, v{44+r}"); A(f"v_add_f32 v{48+r}, v{48+r}, v{52+r}")
    for r in range(4): A(f"v_add_f32 v{40+r}, v{40+r}, v{48+r}")
    for r in range(4): A(f"v_add_f32 v{40+r}, v{56+r}, v{40+r}")
    A("v_cvt_pk_bf16_f32 v40, v40, v41"); A("v_cvt_pk_bf16_f32 v41, v42, v43")
    A("buffer_store_dwordx2 v[40:41], v61, s[24:27], s90 offen")
    A("s_cmp_lg_u32 s2, 0")
    A("s_cbranch_scc1 L_noep")
    A("s_mov_b64 exec, 1")
    A("buffer_store_dword v62, v21, s[16:19], 0 offen")
    if dbgtime:
        A("s_memrealtime s[42:43]"); srd(28, 84, 256); A("s_waitcnt lgkmcnt(0)")
        A("s_sub_u32 s42, s42, s40"); A("v_mov_b32 v45, s42"); A("buffer_store_dword v45, v21, s[28:31], 0 offen")
    A("L_noep:")
    A("s_mov_b64 exec, -1")
    A("s_branch L_fin")

    A("L_helper:")
    inS[0] = False
    A(f"s_setprio {hprio}")
    if x_nohelper:
        A("s_waitcnt lgkmcnt(0)"); srd(16, 86, WS_BYTES); A("s_barrier"); A("s_branch L_noffn")
    A("v_lshlrev_b32 v1, 2, v0")
    A("v_mul_u32_u24 v2, 12288, v36"); A("v_add_u32 v2, v2, v38")
    A(f"s_mul_i32 s7, s6, {80*12288}"); A("s_mul_i32 s38, s5, 384"); A("s_add_u32 s7, s7, s38")
    A("s_waitcnt lgkmcnt(0)")
    srd(8, 64, 1280)
    srd(20, 70, 640 * 6144 * 2)
    for k in range(5): A(f"buffer_load_dword v{40+k}, v1, s[8:11], 0 offen offset:{256*k}")
    WQ = 100
    if warm:
        srd(16, 86, WS_BYTES)
        srd(24, 76, 640 * 1536 * 2); srd(28, 78, 640 * 1536 * 2); srd(32, 80, 1536 * 640 * 2)
        srd(12, 72, 6144 * 640 * 2)
        A("v_mov_b32 v90, 0")
        A("s_mov_b64 exec, 1")
        A(f"s_lshl_b32 s38, s4, 10"); A(f"s_add_u32 s38, s38, {QX}")
        A("buffer_load_dword v91, v90, s[16:19], s38 offen sc1")
        if warm > 1:
            A(f"s_mul_i32 s38, s6, {80*3072}")
            A("buffer_load_dword v92, v90, s[24:27], s38 offen nt")
            A("buffer_load_dword v93, v90, s[28:31], s38 offen nt")
            A(f"s_mul_i32 s38, s4, {6*1280}")
            A("buffer_load_dword v94, v90, s[32:35], s38 offen nt")
            A(f"s_mul_i32 s38, s4, {24*1280}")
            A("buffer_load_dword v95, v90, s[12:15], s38 offen nt")
        if warm > 2:
            srd(12, 68, 201326592)
            A(f"s_mul_i32 s38, s5, {16384*384}")
            for pg in range(4):
                A(f"buffer_load_dword v96, v90, s[12:15], s38 offen nt")
                A(f"s_add_u32 s38, s38, {(2<<20) - 64}")
            srd(12, 66, 201326592)
            A(f"s_mul_i32 s38, s5, {16384*384}")
            for pg in range(3):
                A(f"s_add_u32 s38, s38, {(2<<20) - 64}")
                A(f"buffer_load_dword v96, v90, s[12:15], s38 offen nt")
        A("s_mov_b64 exec, -1")
    if x_nowq: A("v_mov_b32 v2, 0x40000000")
    for gq in range(10):
        if gq: A(f"s_add_u32 s7, s7, {8*12288}")
        for it in range(3):
            r = WQ + 12 * gq + 4 * it
            if 3 * gq + it >= wqd: A(f"s_waitcnt vmcnt({wqd - 1})")
            A(f"buffer_load_dwordx4 v[{r}:{r+3}], v2, s[20:23], s7 offen offset:{128*it} {pol}")
    A("s_load_dword s63, s[86:87], 0")
    srd(16, 86, WS_BYTES)
    srd(24, 76, 640 * 1536 * 2); srd(28, 78, 640 * 1536 * 2); srd(32, 80, 1536 * 640 * 2)
    A("s_waitcnt vmcnt(30)")
    for k in range(5):
        A(f"v_lshlrev_b32 v{50+2*k}, 16, v{40+k}"); A(f"v_and_b32 v{51+2*k}, s60, v{40+k}")
    A("v_add_f32 v45, v50, v51")
    for k in range(2, 10): A(f"v_add_f32 v45, v45, v{50+k}")
    red8([45], "v_add_f32"); redhi([45], [46], "v_add_f32")
    A(f"v_mul_f32 v45, {f2u(1/640):#x}, v45")
    A("v_sub_f32 v47, v50, v45"); A("v_mul_f32 v46, v47, v47")
    for k in range(1, 10):
        A(f"v_sub_f32 v47, v{50+k}, v45"); A("v_fmac_f32 v46, v47, v47")
    red8([46], "v_add_f32"); redhi([46], [47], "v_add_f32")
    A(f"v_mul_f32 v46, {f2u(1/640):#x}, v46")
    bfr(45, 45); bfr(46, 46)
    A(f"v_add_f32 v46, {f2u(1e-5):#x}, v46"); bfr(46, 46)
    A("v_sqrt_f32 v46, v46"); nop(0); bfr(46, 46)
    A("v_rcp_f32 v47, v46")
    for k in range(10):
        A(f"v_sub_f32 v{50+k}, v{50+k}, v45"); bfr(50 + k, 50 + k)
    for k in range(10):
        A(f"v_mul_f32 v48, v{50+k}, v47")
        A(f"v_fma_f32 v49, -v48, v46, v{50+k}")
        A(f"v_fma_f32 v{50+k}, v49, v47, v48")
    for k in range(5):
        A(f"v_cvt_pk_bf16_f32 v{40+k}, v{50+2*k}, v{51+2*k}")
        A(f"ds_write_b32 v1, v{40+k} offset:{L_XN + 256*k}")
    A("s_mul_i32 s38, s6, 160"); A("v_lshlrev_b32 v3, 1, v36"); A("v_add_u32 v3, s38, v3")
    for gq in range(10): A(f"ds_read_u16 v{60+gq}, v3 offset:{L_XN + 16*gq}")
    A("v_lshrrev_b32 v20, 5, v0"); A("v_mul_u32_u24 v20, 768, v20")
    A("v_lshlrev_b32 v21, 5, v37"); A("v_add_u32 v20, v20, v21")
    A("v_and_b32 v21, 16, v0"); A("v_add_u32 v20, v20, v21")
    A("v_mul_u32_u24 v21, 12, v0"); A(f"v_add_u32 v21, {L_TMP}, v21")
    A("v_lshlrev_b32 v22, 4, v0")
    A("s_waitcnt lgkmcnt(0)")
    A("s_add_u32 s63, s63, 0x9E3779B9")
    for gq in range(10): A(f"v_lshl_or_b32 v{60+gq}, v{60+gq}, 16, v{60+gq}")
    for gq in range(10):
        sel = 28 if gq % 2 == 0 else 32
        for r in range(4): A(f"v_and_b32 v{sel+r}, v{60+gq}, v{4+r}")
        A(f"s_waitcnt vmcnt({27 - 3*gq})")
        nop(0)
        for it in range(3):
            r = WQ + 12 * gq + 4 * it
            c = "0" if gq == 0 else f"v[{8+4*it}:{11+4*it}]"
            A(f"v_mfma_f32_16x16x32_bf16 v[{8+4*it}:{11+4*it}], v[{sel}:{sel+3}], v[{r}:{r+3}], {c}")
    stamp(1)
    A(f"s_lshl_b32 s38, s4, 10"); A(f"s_add_u32 s38, s38, {QX}")
    A(f"s_lshl_b32 s91, s5, 13"); A(f"s_add_u32 s91, s91, {QX}"); A("s_add_u32 s92, s91, 4096")
    A("v_mov_b32 v43, s63")
    nop(3)
    A("s_mov_b64 exec, s[36:37]")
    for it in range(3): A(f"ds_write_b128 v20, v[{8+4*it}:{11+4*it}] offset:{L_TMP + 256*it}")
    A("s_mov_b64 exec, -1")
    for e in range(3): A(f"ds_read2_b32 v[{44+2*e}:{45+2*e}], v21 offset0:{e} offset1:{e+192}")
    A("s_waitcnt lgkmcnt(0)")
    for e in range(3): A(f"v_add_f32 v{40+e}, v{44+2*e}, v{45+2*e}")
    if xq != 2: A("buffer_store_dwordx4 v[40:43], v22, s[16:19], s38 offen sc1" + (" nt" if xq == 5 else "") + (" sc0" if xq == 6 else ""))
    stamp(2)
    if xq in (3, 4):
        A("s_waitcnt vmcnt(0)")
        stamp(6)
        if xq == 3:
            for z in range(3): A("s_sleep 25")
            stamp(2)
    A(f"s_mov_b32 s38, {SPIN}")
    QM = [40 + 2 * p for p in range(8)] if not diag else [64 + 2 * p for p in range(8)]
    QM = [8, 10, 12, 14, 56, 58, 94, 96]
    for p in range(8): A(f"s_mov_b64 s[{QM[p]}:{QM[p]+1}], -1")
    A("L_pollq:")
    for p in range(8):
        A(f"s_mov_b64 exec, s[{QM[p]}:{QM[p]+1}]")
        A(f"buffer_load_dwordx4 v[{100+4*p}:{103+4*p}], v22, s[16:19], s{91 + p//4} offen offset:{1024*(p%4)} sc1")
    A("s_mov_b64 exec, -1")
    for p in range(8):
        A(f"s_waitcnt vmcnt({7-p})")
        A(f"v_cmp_ne_u32 s[{QM[p]}:{QM[p]+1}], s63, v{103+4*p}")
    A(f"s_or_b64 vcc, s[{QM[0]}:{QM[0]+1}], s[{QM[1]}:{QM[1]+1}]")
    for p in range(2, 8): A(f"s_or_b64 vcc, vcc, s[{QM[p]}:{QM[p]+1}]")
    if not x_nopollq:
      A("s_cbranch_scc0 L_gotq")
      if slq: A(f"s_sleep {slq}")
      A("s_sub_u32 s38, s38, 1")
      A("s_cbranch_scc0 L_pollq")
    A("L_gotq:")
    stamp(3)
    for p in range(1, 8):
        for e in range(3): A(f"v_add_f32 v{100+e}, v{100+e}, v{100+4*p+e}")
    A("v_cvt_pk_bf16_f32 v44, v100, v101"); A("v_cvt_pk_bf16_f32 v45, v102, v102")
    A("v_mul_u32_u24 v23, 6, v0")
    A(f"ds_write_b16 v23, v44 offset:{L_QBF}")
    A(f"ds_write_b16_d16_hi v23, v44 offset:{L_QBF+2}")
    A(f"ds_write_b16 v23, v45 offset:{L_QBF+4}")
    A("s_waitcnt lgkmcnt(0)")
    A("s_barrier")
    A("s_setprio 0")
    stamp(4)
    if x_noffn: A("s_branch L_noffn")
    A("v_mul_u32_u24 v2, 3072, v36"); A("v_add_u32 v2, v2, v38")
    A("v_mov_b32 v24, 0x40000000")
    A("v_cmp_lt_u32 vcc, 5, v37"); nop(1)
    A("v_cndmask_b32 v2, v2, v24, vcc")
    A(f"s_mul_i32 s7, s6, {80*3072}"); A("s_mul_i32 s38, s5, 96"); A("s_add_u32 s7, s7, s38")
    def fissue(gq):
        if gq: A(f"s_add_u32 s7, s7, {8*3072}")
        A(f"buffer_load_dwordx4 v[{100+8*gq}:{103+8*gq}], v2, s[24:27], s7 offen {pol}")
        A(f"buffer_load_dwordx4 v[{104+8*gq}:{107+8*gq}], v2, s[28:31], s7 offen {pol}")
    for gq in range(FD): fissue(gq)
    for gq in range(10):
        sel = 28 if gq % 2 == 0 else 32
        for r in range(4): A(f"v_and_b32 v{sel+r}, v{60+gq}, v{4+r}")
        nis = min(gq + FD, 10)
        A(f"s_waitcnt vmcnt({2*(nis - gq - 1)})")
        if gq + FD < 10: fissue(gq + FD)
        else: nop(0)
        for m in range(2):
            r = 100 + 8 * gq + 4 * m
            c = "0" if gq == 0 else f"v[{8+4*m}:{11+4*m}]"
            A(f"v_mfma_f32_16x16x32_bf16 v[{8+4*m}:{11+4*m}], v[{sel}:{sel+3}], v[{r}:{r+3}], {c}")
    A("v_mul_u32_u24 v2, 1280, v36"); A("v_add_u32 v2, v2, v38")
    A("v_cmp_lt_u32 vcc, 5, v36"); nop(1)
    A("v_cndmask_b32 v2, v2, v24, vcc")
    A(f"s_mul_i32 s7, s4, {6*1280}")
    for lc in range(10):
        A(f"buffer_load_dwordx4 v[{200+4*lc}:{203+4*lc}], v2, s[32:35], s7 offen offset:{128*lc} {pol}")
    A("s_mov_b64 exec, s[36:37]")
    for m in range(2): A(f"ds_write_b128 v20, v[{8+4*m}:{11+4*m}] offset:{L_TMP + 256*m}")
    A("s_mov_b64 exec, -1")
    A("v_mul_u32_u24 v21, 6, v36"); A("v_add_u32 v21, v21, v37"); A("v_lshlrev_b32 v21, 2, v21"); A(f"v_add_u32 v21, {L_TMP}, v21")
    A("v_add_u32 v23, 256, v21")
    A("ds_read2_b32 v[44:45], v21 offset0:0 offset1:192")
    A("ds_read2_b32 v[46:47], v23 offset0:0 offset1:192")
    A("v_lshlrev_b32 v23, 10, v36"); A("v_add_u32 v23, v23, v38")
    A("s_lshl_b32 s38, s5, 13"); A("s_lshl_b32 s39, s6, 7"); A("s_add_u32 s38, s38, s39"); A(f"s_add_u32 s38, s38, {FX}")
    A("v_cmp_gt_u32 vcc, 6, v37")
    A("s_waitcnt lgkmcnt(0)")
    A("v_add_f32 v40, v44, v45"); A("v_add_f32 v41, v46, v47")
    A("v_cndmask_b32 v40, 0, v40, vcc"); A("v_cndmask_b32 v41, 0, v41, vcc")
    A("v_mov_b32 v42, 0")
    A("buffer_store_dwordx4 v[40:43], v23, s[16:19], s38 offen sc1")
    A("v_lshlrev_b32 v22, 7, v37"); A("v_lshlrev_b32 v25, 4, v36"); A("v_add_u32 v22, v22, v25")
    A(f"s_lshl_b32 s91, s4, 10"); A(f"s_add_u32 s91, s91, {FX}")
    A(f"s_mov_b32 s38, {SPIN}")
    A("s_waitcnt vmcnt(0)")
    A("s_sleep 40")
    A("L_pollf:")
    A("buffer_load_dwordx4 v[44:47], v22, s[16:19], s91 offen sc1")
    A("s_waitcnt vmcnt(0)")
    A("v_cmp_ne_u32 vcc, s63, v47")
    A("s_mov_b64 exec, vcc")
    A("s_cbranch_execz L_gotf")
    A("s_sleep 32")
    A("s_sub_u32 s38, s38, 1")
    A("s_cbranch_scc0 L_pollf")
    A("L_gotf:")
    A("s_mov_b64 exec, -1")
    red8([44, 45], "v_add_f32")
    bfr(44, 44); bfr(45, 45)
    A("v_max_f32 v44, 0, v44")
    A("v_mul_f32 v44, v44, v45")
    A("v_cvt_pk_bf16_f32 v44, v44, v44")
    for r in range(4): A(f"v_and_b32 v{28+r}, v44, v{4+r}")
    nop(1)
    for lc in range(10):
        A(f"v_mfma_f32_16x16x32_bf16 v[{100+4*lc}:{103+4*lc}], v[28:31], v[{200+4*lc}:{203+4*lc}], 0")
    A("v_lshrrev_b32 v20, 5, v0"); A("v_mul_u32_u24 v20, 2560, v20")
    A("v_lshlrev_b32 v21, 5, v37"); A("v_add_u32 v20, v20, v21")
    A("v_and_b32 v21, 16, v0"); A("v_add_u32 v20, v20, v21")
    nop(3)
    A("s_mov_b64 exec, s[36:37]")
    for lc in range(10): A(f"ds_write_b128 v20, v[{100+4*lc}:{103+4*lc}] offset:{L_YF + 256*lc}")
    A("s_mov_b64 exec, -1")
    A("s_waitcnt lgkmcnt(0)")
    A("L_noffn:")
    stamp(5)
    A("s_barrier")

    A("L_fin:")
    if diag:
        stamp(7)
        A("s_waitcnt lgkmcnt(0)")
        A("s_mul_i32 s38, s2, 5"); A("s_add_u32 s38, s38, s3"); A("s_lshl_b32 s38, s38, 6"); A(f"s_add_u32 s38, s38, {700<<20}")
        A("v_mov_b32 v6, 0")
        for j in range(8):
            A(f"v_mov_b32 v2, s{40+2*j}"); A(f"v_mov_b32 v3, s{41+2*j}")
            A(f"buffer_store_dwordx2 v[2:3], v6, s[16:19], s38 offen offset:{8*j}")
            nop(1)
    A("L_end:")
    A("s_endpgm")
    A('.section .rodata,"a"'); A(".p2align 6")
    A(f".amdhsa_kernel {NAME}_kernel")
    A("  .amdhsa_next_free_vgpr 256"); A("  .amdhsa_next_free_sgpr 102"); A("  .amdhsa_accum_offset 256")
    A("  .amdhsa_group_segment_fixed_size 0"); A("  .amdhsa_kernarg_size 96"); A("  .amdhsa_user_sgpr_count 2")
    A("  .amdhsa_user_sgpr_kernarg_segment_ptr 1"); A("  .amdhsa_system_sgpr_workgroup_id_x 1")
    A(".end_amdhsa_kernel")
    return "\n".join(L) + "\n"

if __name__ == "__main__":
    import ast
    out = sys.argv[1]
    kw = {}
    for a in sys.argv[2:]:
        k, v = a.split("=")
        try: v = ast.literal_eval(v)
        except Exception: pass
        kw[k] = v
    open(out, "w").write(gen(**kw))
```

```python
import sys, struct
NAME = "parallel_sum__gqa_block_cached__glu_gated_reglu__decode"

def f2u(x):
    return struct.unpack("<I", struct.pack("<f", x))[0]

HEADER = """; Kernarg layout for this problem (96 bytes, ptrs only, base s[0:1]):
"""

QX, FX, OX, MX, YX = 0x10000, 0x50000, 0x90000, 0xD0000, 0x100000
WS_BYTES = 805306368
L_XN, L_TMP, L_QBF, L_YF, L_PART, L_ML = 0, 1280, 2816, 3200, 8320, 14464
L_IN, L_RED, L_PRG, L_REF = 14592, 15616, 15872, 15904
LDS_BYTES = 15936
PX = 0xE0000
SPIN = 1 << 20

def gen(D=6, N=40, catch=3, diag=False, pol="nt", wo_early=60, D0=None, dbgtime=False, calib=0, x_nowq=False, x_nopollq=False, x_noffn=False, wqd=30, es=False, x_nohelper=False, hprio=3, warm=0, xq=4, np1=1, sl1=0, np2=1, sl2=0, thr2=24, FD=4, D2=None, sw=0, slq=4, fb=2, Dlo=5, Dhi=8, T=56.0, tau=0.1351, t1=7.2, per=12, fbstart=None, endhi=0, bias=0.3, nsamp=16, slc=8, rounds=(40, 76, 148, 220, 292, 364), gpol='sc1', pre=0, dl1=0, dl2=0, stg=0, stg0=0, stgsl=0, alias=1, fcompact=1):
    OX = QX if alias else 0x90000
    L = []
    A = L.append
    def nop(n): A(f"s_nop {n}")
    def stamp(j, early=False):
        if es and inS[0] and j in (3, 5, 6) and not early: return
        if diag: A(f"s_memrealtime s[{40+2*j}:{41+2*j}]")
    inS = [True]
    def dpp(op, dst, src_dpp, src1, ctl, bank="0xf"):
        A(f"{op}_dpp v{dst}, v{src_dpp}, v{src1} {ctl} row_mask:0xf bank_mask:{bank}")
    def red8(regs, op):
        for ctl in ["quad_perm:[1,0,3,2]", "quad_perm:[2,3,0,1]", "row_half_mirror"]:
            if len(regs) < 3: nop(2 - len(regs) + 0) if len(regs) == 1 else nop(0)
            for r in regs: dpp(op, r, r, r, ctl)
    def redhi(regs, tmps, op, first="row_ror:8"):
        if len(regs) < 3: nop(1) if len(regs) == 1 else nop(0)
        for r in regs: dpp(op, r, r, r, first)
        for sw in ["v_permlane16_swap_b32", "v_permlane32_swap_b32"]:
            for r, t in zip(regs, tmps): A(f"v_mov_b32 v{t}, v{r}")
            nop(1)
            for r, t in zip(regs, tmps): A(f"{sw} v{t}, v{r}")
            for r, t in zip(regs, tmps): A(f"{op} v{r}, v{t}, v{r}")
    def bfr(dst, src):
        A(f"v_cvt_pk_bf16_f32 v{dst}, v{src}, v{src}")
        A(f"v_and_b32 v{dst}, s60, v{dst}")
    def tagword(dst, r):
        A(f"v_perm_b32 v{dst}, v{r+1}, v{r}, s100")
        A(f"v_perm_b32 v{dst}, v{r+2}, v{dst}, s101")
        A(f"v_perm_b32 v{dst}, v{r+3}, v{dst}, s59")
    def srd(d, p, nbytes):
        A(f"s_mov_b32 s{d}, s{p}"); A(f"s_mov_b32 s{d+1}, s{p+1}")
        A(f"s_mov_b32 s{d+2}, {nbytes}"); A(f"s_mov_b32 s{d+3}, 0x20000")

    def sched(I):
        n1 = 90
        tn = lambda n: T - (393 - n) * tau
        tgt = tn(I) if I >= n1 else t1 + (tn(n1) - t1) * (I - 40) / (n1 - 40)
        return int(round(tgt * 100))
    A(HEADER.rstrip())
    A(f"; @launch grid=(256,1,1) block=(320,1,1) lds={LDS_BYTES}")
    A('.amdgcn_target "amdgcn-amd-amdhsa--gfx950"')
    A(".text"); A(f".globl {NAME}_kernel"); A(".p2align 8"); A(f".type {NAME}_kernel,@function")
    A(f"{NAME}_kernel:")
    A("s_cmp_ge_u32 s2, 256")
    A("s_cbranch_scc1 L_end")
    A("s_load_dwordx16 s[64:79], s[0:1], 0")
    A("s_load_dwordx8 s[80:87], s[0:1], 64")
    if diag:
        for j in range(1, 8): A(f"s_mov_b64 s[{40+2*j}:{41+2*j}], 0")
    stamp(0)
    if dbgtime: A("s_memrealtime s[40:41]")
    if fb: A("s_memrealtime s[28:29]")
    A("v_lshrrev_b32 v1, 6, v0")
    A("v_and_b32 v0, 63, v0")
    A("v_readfirstlane_b32 s3, v1")
    A("s_and_b32 s4, s2, 7"); A("s_lshl_b32 s4, s4, 5"); A("s_lshr_b32 s5, s2, 3"); A("s_add_u32 s4, s4, s5")
    A("s_lshr_b32 s5, s4, 3"); A("s_and_b32 s6, s4, 7")
    A("s_mov_b32 s60, 0xffff0000")
    A(f"s_mov_b32 s61, {f2u(192 ** -0.5):#x}")
    A(f"s_mov_b32 s62, {f2u(1.4426950408889634):#x}")
    A("v_lshrrev_b32 v36, 3, v0")
    A("v_and_b32 v37, 7, v0")
    A("v_lshlrev_b32 v38, 4, v37")
    A("v_and_b32 v39, 1, v0")
    A("v_lshlrev_b32 v39, 4, v39")
    A("v_mov_b32 v34, 0xffff")
    A("v_lshlrev_b32 v39, v39, v34")
    A("v_lshrrev_b32 v35, 1, v37")
    for r in range(4):
        A(f"v_cmp_eq_u32 vcc, {r}, v35")
        nop(1)
        A(f"v_cndmask_b32 v{4+r}, 0, v39, vcc")
    A("s_mov_b32 s36, 0x00ff00ff"); A("s_mov_b32 s37, 0xff00ff00")
    A("s_cmp_eq_u32 s3, 4")
    A("s_cbranch_scc1 L_helper")

    A("v_mul_u32_u24 v1, 384, v36")
    A("v_add_u32 v1, v1, v38")
    A(f"s_mul_i32 s7, s5, {16384*384}")
    A("s_lshl_b32 s38, s6, 2"); A("s_add_u32 s38, s38, s3"); A("s_mul_i32 s38, s38, 3072")
    A("s_add_u32 s7, s7, s38")
    A("s_waitcnt lgkmcnt(0)")
    srd(8, 66, 201326592)
    SC0 = 40
    slots = [56 + 4 * i for i in range(12)] + [104 + 4 * i for i in range(37 if fb == 2 else 38)]
    early = set(slots[:12])
    free = list(slots)
    NK = 192; NV = 192; NWO = 9
    order = [("K", n) for n in range(NK)] + [("V", n) for n in range(NV)]
    pos = len(order) - wo_early
    order = order[:pos] + [("W", n) for n in range(NWO)] + order[pos:]
    slot_of = {}
    st = dict(I=0)
    def issue():
        kind, n = order[st["I"]]
        r = free.pop(0)
        slot_of[(kind, n)] = r
        if kind in "KV":
            g, it = divmod(n, 3)
            if it == 0 or (st["I"] > 0 and order[st["I"] - 1][0] == "W"):
                A(f"s_add_u32 s39, s7, {g * 98304}")
            s = "s[8:11]" if kind == "K" else "s[12:15]"
            A(f"buffer_load_dwordx4 v[{r}:{r+3}], v1, {s}, s39 offen offset:{128*it} {pol}")
        else:
            e, k = divmod(n, 3)
            vo = "v34" if k < 2 else "v35"
            A(f"buffer_load_dwordx4 v[{r}:{r+3}], {vo}, s[20:23], s{56+e} offen offset:{512*k} {pol}")
        st["I"] += 1
    idx = {o: i for i, o in enumerate(order)}
    landed = [0]
    def wait_for(count):
        if count > landed[0]:
            A(f"s_waitcnt vmcnt({st['I'] - count})")
            landed[0] = count
    if D0 is None: D0 = D
    def early_prewrite():
        srd(16, 86, WS_BYTES)
        for r in range(4): A(f"v_mov_b32 v{28+r}, {r}")
        A("v_lshrrev_b32 v32, 2, v0"); A("s_lshl_b32 s38, s3, 4"); A("v_add_u32 v32, s38, v32")
        A("v_cmp_gt_u32 vcc, 40, v32")
        A("v_lshlrev_b32 v32, 14, v32"); A("v_and_b32 v33, 48, v38"); A("v_add_u32 v32, v32, v33")
        A(f"s_lshl_b32 s38, s4, 6"); A(f"s_add_u32 s38, s38, {YX}")
        A("s_mov_b64 exec, vcc")
        A("buffer_store_dwordx4 v[28:31], v32, s[16:19], s38 offen sc1")
        A("s_mov_b64 exec, -1")
    if pre & 256: early_prewrite()
    for i in range(D0): issue()
    srd(12, 68, 201326592)
    srd(16, 86, WS_BYTES)
    srd(20, 72, 6144 * 640 * 2)
    srd(24, 82, 1280)
    A("s_load_dword s63, s[86:87], 0")
    A("s_min_u32 s38, s2, 39"); A("s_lshl_b32 s90, s38, 5")
    A("v_lshrrev_b32 v20, 5, v0"); A("v_mul_u32_u24 v20, 768, v20")
    A("v_lshlrev_b32 v21, 5, v37"); A("v_add_u32 v20, v20, v21")
    A("v_and_b32 v21, 16, v0"); A("v_add_u32 v20, v20, v21")
    A("s_mul_i32 s38, s3, 1536"); A("v_add_u32 v20, s38, v20")
    A("s_lshl_b32 s38, s3, 3"); A("v_mov_b32 v21, s38")
    A("v_lshlrev_b32 v22, 7, v37"); A("v_lshlrev_b32 v23, 4, v36"); A("v_add_u32 v22, v22, v23")
    A(f"s_lshl_b32 s91, s4, 10"); A(f"s_add_u32 s91, s91, {OX}")
    A("v_lshlrev_b32 v23, 10, v36"); A("v_add_u32 v23, v23, v38")
    A("s_lshl_b32 s92, s5, 13"); A("s_lshl_b32 s38, s6, 7"); A("s_add_u32 s92, s92, s38"); A(f"s_add_u32 s92, s92, {OX}")
    A("v_cmp_ne_u32 s[98:99], s6, v36")
    A("v_lshrrev_b32 v24, 5, v0"); A("v_lshlrev_b32 v24, 2, v24")
    A("v_and_b32 v25, 8, v0")
    A("v_cmp_ne_u32 vcc, 0, v25")
    nop(1)
    A("v_cndmask_b32 v24, v24, v25, vcc")
    A("v_add_u32 v24, s3, v24")
    A("v_lshlrev_b32 v25, 4, v24"); A("v_lshlrev_b32 v26, 1, v37"); A("v_add_u32 v25, v25, v26")
    A("v_bfe_u32 v26, v0, 4, 1"); A("v_add_u32 v25, v25, v26")
    A("v_lshrrev_b32 v26, 2, v25"); A("v_lshlrev_b32 v26, 14, v26")
    A("v_and_b32 v27, 3, v25"); A("v_lshlrev_b32 v27, 4, v27"); A("v_add_u32 v26, v26, v27")
    A("v_min_u32 v25, 159, v25"); A("v_lshlrev_b32 v25, 4, v25")
    A("v_and_b32 v27, 40, v0")
    A("v_cmp_eq_u32 vcc, 40, v27")
    A("v_cmp_lt_u32 s[96:97], 9, v24")
    A("s_or_b64 vcc, vcc, s[96:97]")
    A("v_mov_b32 v27, 0x40000000")
    nop(0)
    A("v_cndmask_b32 v26, v26, v27, vcc")
    A(f"s_lshl_b32 s93, s4, 6"); A(f"s_add_u32 s93, s93, {YX}")
    A("v_mul_u32_u24 v24, 24, v36"); A("v_add_u32 v24, v24, v37"); A("v_lshlrev_b32 v24, 2, v24")
    A(f"v_add_u32 v24, {L_PART}, v24")
    A("v_lshlrev_b32 v39, 4, v0")
    A("s_mov_b32 s95, 0xffffff00"); A("s_mov_b32 s100, 0x0c0c0400"); A("s_mov_b32 s101, 0x0c040100"); A("s_mov_b32 s59, 0x04020100")
    A("v_mul_u32_u24 v34, 1280, v36"); A("v_add_u32 v34, v34, v38")
    A("s_lshl_b32 s38, s3, 7"); A("v_add_u32 v34, s38, v34")
    A("s_cmp_ge_u32 s3, 2"); A("s_cselect_b32 s38, 0x40000000, 0"); A("v_add_u32 v35, s38, v34")
    A("s_mul_i32 s56, s4, 30720"); A("s_add_u32 s57, s56, 10240"); A("s_add_u32 s58, s56, 20480")
    A("v_mov_b32 v2, 0xff800000")
    A("v_mov_b32 v3, 0")
    dd = D0
    while st["I"] < N:
        if dd < D and st["I"] >= 8:
            dd += 1
        else:
            wait_for(st["I"] - dd + 1)
            if es and landed[0] in (1, 11, 23): stamp({1: 3, 11: 5, 23: 6}[landed[0]], True)
        issue()
    A("s_waitcnt lgkmcnt(0)")
    A("s_add_u32 s63, s63, 0x9E3779B9")
    A("s_and_b32 s94, s63, 0xff"); A("v_mov_b32 v27, s94"); A("s_mul_i32 s94, s94, 0x01010101")
    if fb == 2:
        A("s_memrealtime s[88:89]"); A(f"v_mov_b32 v255, {sched(N)}"); A("s_waitcnt lgkmcnt(0)")
        A("v_mov_b32 v254, s88"); A(f"ds_write_b64 v21, v[254:255] offset:{L_PRG}"); A("s_waitcnt lgkmcnt(0)")
    stamp(1)
    A("s_barrier")
    for it in range(3): A(f"ds_read_b128 v[{8+4*it}:{11+4*it}], v38 offset:{L_QBF + 128*it}")
    A("s_waitcnt lgkmcnt(0)")
    stamp(2)

    def prep(g):
        A(f"v_fma_f32 v33, v{SC0+g}, s62, -v2")
        A("v_exp_f32 v33, v33")
        nop(0)
        A("v_add_f32 v3, v3, v33")
        A("v_cvt_pk_bf16_f32 v33, v33, v33")
        for r in range(4): A(f"v_and_b32 v{28+r}, v33, v{4+r}")
    ACC = [8, 12, 16]
    def consume(kind, n):
        r = slot_of[(kind, n)]
        g, it = divmod(n, 3)
        if kind == "K":
            for j in range(4):
                c = "0" if (it == 0 and j == 0) else "v32"
                A(f"v_dot2_f32_bf16 v32, v{r+j}, v{8+4*it+j}, {c}")
            if it == 2:
                nop(2)
                dpp("v_add_f32", 33, 32, 32, "quad_perm:[1,0,3,2]"); nop(1)
                dpp("v_add_f32", 33, 33, 33, "quad_perm:[2,3,0,1]"); nop(1)
                dpp("v_add_f32", 33, 33, 33, "row_half_mirror")
                bfr(33, 33)
                A("v_mul_f32 v33, s61, v33")
                A("v_cvt_pk_bf16_f32 v33, v33, v33")
                A(f"v_and_b32 v{SC0+g}, s60, v33")
                A(f"v_max_f32 v2, v2, v{SC0+g}")
        else:
            c = "0" if g == 0 else f"v[{ACC[it]}:{ACC[it]+3}]"
            A(f"v_mfma_f32_16x16x32_bf16 v[{ACC[it]}:{ACC[it]+3}], v[28:31], v[{r}:{r+3}], {c}")
            if it == 2 and g < 63:
                prep(g + 1)
                if g + 1 == 63:
                    redhi([3], [33], "v_add_f32")
                nop(1)
        if r not in early: free.append(r)
    def transition():
        stamp(3)
        redhi([2], [33], "v_max_f32")
        A("v_mul_f32 v2, s62, v2")
        prep(0)
        nop(1)
    work = [("K", n) for n in range(NK)] + [("T", 0)] + [("V", n) for n in range(NV)]
    wi = 0
    total = len(order)
    if fbstart is None: fbstart = N + 2
    while wi < len(work):
        cnt = 0
        while wi < len(work) and cnt < catch:
            k = work[wi]
            if k[0] == "T":
                transition(); wi += 1; cnt = catch; break
            if idx[k] < landed[0]:
                consume(*k); wi += 1; cnt += 1
            else:
                break
        if wi >= len(work): break
        if st["I"] < total and fb:
            I = st["I"]
            wait_for(I - Dhi + 1)
            if I < fbstart:
                A(f"s_waitcnt vmcnt({D-1})")
            elif I < total - endhi:
                A(f"s_cbranch_vccnz L_fb{I}"); A(f"s_waitcnt vmcnt({Dlo-1})"); A(f"L_fb{I}:")
            issue()
            if (I - fbstart + 2) % per == 0:
                A("s_memrealtime s[88:89]")
                if fb == 2: A(f"ds_read_b64 v[252:253], v21 offset:{L_REF}")
            if (I - fbstart + 1) % per == 0 and I > N:
                A("s_waitcnt lgkmcnt(0)")
                S = sched(I)
                if fb == 1:
                    A("s_sub_u32 s88, s88, s28")
                    A(f"s_cmp_gt_i32 s88, {S}")
                    A("s_cselect_b64 vcc, -1, 0")
                else:
                    A(f"v_mov_b32 v255, {S}")
                    A("v_mul_u32_u24 v253, v255, v253")
                    A("v_mov_b32 v254, s88")
                    A("v_lshrrev_b32 v253, 12, v253")
                    A(f"ds_write_b64 v21, v[254:255] offset:{L_PRG}")
                    A("v_add_u32 v253, v253, v252")
                    A("v_sub_u32 v253, v254, v253")
                    A("v_cmp_lt_i32 vcc, 0, v253")
        elif st["I"] < total:
            dcur = D2 if (D2 and st["I"] >= total - NWO - sw) else D
            wait_for(st["I"] - dcur + 1)
            issue()
            if st["I"] < total and st["I"] - landed[0] < dcur: issue()
            if all(o[0] == "W" for o in order[st["I"]:]) and idx[("V", NV - 1)] < landed[0] + 1:
                while st["I"] < total: issue()
        else:
            k = work[wi]
            if k[0] != "T": wait_for(idx[k] + 1)
    while st["I"] < total: issue()
    stamp(4)
    A(f"ds_write_b64 v21, v[2:3] offset:{L_ML}")
    A("s_mov_b64 exec, s[36:37]")
    nop(5)
    for it in range(3): A(f"ds_write_b128 v20, v[{ACC[it]}:{ACC[it]+3}] offset:{L_PART + 256*it}")
    A("s_mov_b64 exec, -1")
    A("s_waitcnt lgkmcnt(0)")
    A("s_barrier")
    stamp(5)
    A(f"ds_read_b128 v[84:87], v25 offset:{L_YF}")
    A(f"ds_read_b128 v[88:91], v25 offset:{L_YF+2560}")
    A("s_cmp_eq_u32 s3, 1")
    A("s_cbranch_scc1 L_poller1")
    A("s_cmp_lg_u32 s3, 0")
    A("s_cbranch_scc1 L_b3")
    A(f"ds_read_b128 v[40:43], v21 offset:{L_ML}")
    A(f"ds_read_b128 v[44:47], v21 offset:{L_ML+16}")
    for w in range(4):
        if w: A(f"v_add_u32 v{92+w}, {1536*w}, v24")
        for e in range(3):
            r = 48 + w * 6 + e * 2
            A(f"ds_read2_b32 v[{r}:{r+1}], v{92+w if w else 24} offset0:{8*e} offset1:{8*e+192}")
    A("s_waitcnt lgkmcnt(12)")
    A("v_max3_f32 v72, v40, v42, v44"); A("v_max_f32 v72, v72, v46")
    A("v_and_b32 v72, s95, v72")
    for w in range(4): A(f"v_sub_f32 v{40+2*w}, v{40+2*w}, v72")
    for w in range(4): A(f"v_exp_f32 v{40+2*w}, v{40+2*w}")
    A("s_mov_b32 vcc_lo, 0xaaaaaaaa"); A("s_mov_b32 vcc_hi, 0xaaaaaaaa")
    A("v_mul_f32 v73, v40, v41")
    for w in range(1, 4): A(f"v_fmac_f32 v73, v{40+2*w}, v{41+2*w}")
    A("v_cndmask_b32 v79, v72, v73, vcc")
    A("s_waitcnt lgkmcnt(0)")
    for w in range(4):
        for e in range(3):
            r = 48 + w * 6 + e * 2
            A(f"v_add_f32 v{r}, v{r}, v{r+1}")
    for e in range(3): A(f"v_mul_f32 v{76+e}, v40, v{48+e*2}")
    for w in range(1, 4):
        for e in range(3): A(f"v_fmac_f32 v{76+e}, v{40+2*w}, v{48+w*6+e*2}")
    for r in range(4): A(f"v_and_or_b32 v{76+r}, v{76+r}, s95, v27")
    A("s_mov_b64 exec, s[98:99]")
    A("buffer_store_dwordx4 v[76:79], v23, s[16:19], s92 offen sc1")
    A("s_not_b64 exec, exec")
    A(f"ds_write_b128 v22, v[76:79] offset:{L_IN}")
    A("s_mov_b64 exec, -1")
    A("s_branch L_b3")
    A("L_poller1:")
    if dl1: A(f"s_sleep {dl1}")
    A("v_cmp_ne_u32 vcc, s6, v37")
    A("s_mov_b64 exec, vcc")
    A(f"s_mov_b32 s38, {SPIN}")
    for k in range(np1):
        if k: A(f"s_sleep {sl1}")
        A(f"buffer_load_dwordx4 v[{40+4*k}:{43+4*k}], v22, s[16:19], s91 offen sc1")
    A("L_poll1:")
    for k in range(np1):
        r = 40 + 4 * k
        A(f"s_waitcnt vmcnt({np1-1})")
        tagword(60, r)
        A("v_cmp_eq_u32 vcc, s94, v60")
        A("s_andn2_b64 s[96:97], exec, vcc")
        A("s_mov_b64 exec, vcc")
        A(f"ds_write_b128 v39, v[{r}:{r+3}] offset:{L_IN}")
        A("s_mov_b64 exec, s[96:97]")
        A("s_cbranch_execz L_got1")
        if np1 == 1 and sl1: A(f"s_sleep {sl1}")
        A("s_waitcnt lgkmcnt(0)")
        A(f"buffer_load_dwordx4 v[{r}:{r+3}], v22, s[16:19], s91 offen sc1")
    A("s_sub_u32 s38, s38, 1")
    A("s_cbranch_scc0 L_poll1")
    A("L_got1:")
    A("s_mov_b64 exec, -1")
    A("L_b3:")
    A("s_waitcnt lgkmcnt(0)")
    A("s_barrier")
    A(f"ds_read_b128 v[92:95], v39 offset:{L_IN}")
    for r in range(4): A(f"v_add_f32 v{84+r}, v{84+r}, v{88+r}")
    stamp(6)
    A("s_waitcnt lgkmcnt(0)")
    A("v_and_b32 v95, s95, v95")
    for e in range(3): A(f"v_and_b32 v{92+e}, s95, v{92+e}")
    A("v_mov_b32 v96, v95"); A("v_mov_b32 v97, v95")
    nop(0)
    A("v_mov_b32_dpp v96, v95 row_ror:8 row_mask:0xf bank_mask:0xc")
    A("v_mov_b32_dpp v97, v95 row_ror:8 row_mask:0xf bank_mask:0x3")
    A("v_mov_b32 v98, v96")
    red8([98], "v_max_f32")
    A("v_sub_f32 v96, v96, v98")
    A("v_exp_f32 v96, v96")
    nop(0)
    A("v_mul_f32 v95, v96, v97")
    for e in range(3): A(f"v_mul_f32 v{92+e}, v96, v{92+e}")
    nop(0)
    red8([95, 92, 93, 94], "v_add_f32")
    A("v_rcp_f32 v95, v95")
    nop(0)
    for e in range(3): A(f"v_mul_f32 v{92+e}, v95, v{92+e}")
    for e in range(3): A(f"v_cvt_pk_bf16_f32 v{92+e}, v{92+e}, v{92+e}")
    for e in range(3):
        for r in range(4): A(f"v_and_b32 v{8+4*e+r}, v{92+e}, v{4+r}")
    if wo_early < max(D, Dhi, D2 or 0) + 12:
        A("s_cmp_eq_u32 s3, 0"); A("s_cbranch_scc1 L_wo0"); A("s_cmp_eq_u32 s3, 1"); A("s_cbranch_scc1 L_wo1")
        A("s_waitcnt vmcnt(0)"); A("L_wo0:"); A("s_waitcnt vmcnt(1)"); A("L_wo1:")
    else: nop(1)
    YA = [60, 64, 68]
    for e in range(3):
        for k in range(3):
            r = slot_of[("W", 3 * e + k)]
            c = "0" if e == 0 else f"v[{YA[k]}:{YA[k]+3}]"
            A(f"v_mfma_f32_16x16x32_bf16 v[{YA[k]}:{YA[k]+3}], v[{8+4*e}:{11+4*e}], v[{r}:{r+3}], {c}")
    nop(7)
    for r in range(4): A(f"v_permlane32_swap_b32 v{60+r}, v{64+r}")
    for r in range(4): A(f"v_mov_b32 v{72+r}, v{68+r}")
    nop(1)
    for r in range(4): A(f"v_permlane32_swap_b32 v{68+r}, v{72+r}")
    for r in range(4): dpp("v_add_f32", 76 + r, 64 + r, 60 + r, "row_ror:8")
    for r in range(4): dpp("v_add_f32", 76 + r, 68 + r, 72 + r, "row_ror:8", bank="0xc")
    for r in range(4): A(f"v_add_f32 v{76+r}, v{76+r}, v{84+r}")
    for r in range(4): A(f"v_and_or_b32 v{76+r}, v{76+r}, s95, v27")
    A("buffer_store_dwordx4 v[76:79], v26, s[16:19], s93 offen sc1")
    A("s_cmp_ge_u32 s2, 40")
    A("s_cbranch_scc1 L_fin")
    A("s_lshl_b32 s91, s2, 14"); A("s_lshl_b32 s38, s3, 12"); A("s_add_u32 s91, s91, s38"); A(f"s_add_u32 s91, s91, {YX}")
    srd(8, 64, 1280)
    A("v_lshlrev_b32 v61, 3, v0")
    A("buffer_load_dwordx2 v[100:101], v61, s[8:11], s90 offen")
    for k in range(4): A(f"s_mov_b64 s[{28+2*k}:{29+2*k}], -1")
    A(f"s_mov_b32 s38, {SPIN}")
    A("s_waitcnt vmcnt(0)")
    if dl2: A(f"s_sleep {dl2}")
    A("L_poll2:")
    for k in range(4):
        A(f"s_mov_b64 exec, s[{28+2*k}:{29+2*k}]")
        A(f"buffer_load_dwordx4 v[{40+4*k}:{43+4*k}], v39, s[16:19], s91 offen offset:{1024*k} sc1")
    A("s_mov_b64 exec, -1")
    for k in range(4):
        A(f"s_waitcnt vmcnt({3-k})")
        tagword(56 + k, 40 + 4 * k)
        A(f"v_cmp_ne_u32 s[{28+2*k}:{29+2*k}], s94, v{56+k}")
    A("s_or_b64 s[96:97], s[28:29], s[30:31]"); A("s_or_b64 vcc, s[32:33], s[34:35]"); A("s_or_b64 vcc, vcc, s[96:97]")
    A("s_cbranch_scc0 L_got2")
    if sl2:
        A("s_bcnt1_i32_b64 s39, vcc"); A(f"s_cmp_lt_u32 s39, {thr2}"); A("s_cbranch_scc1 L_nosl2"); A(f"s_sleep {sl2}"); A("L_nosl2:")
    A("s_sub_u32 s38, s38, 1")
    A("s_cbranch_scc0 L_poll2")
    A("L_got2:")
    for r in range(40, 56): A(f"v_and_b32 v{r}, s95, v{r}")
    for r in range(4):
        A(f"v_add_f32 v{40+r}, v{40+r}, v{44+r}"); A(f"v_add_f32 v{48+r}, v{48+r}, v{52+r}")
    for r in range(4): A(f"v_add_f32 v{40+r}, v{40+r}, v{48+r}")
    for r in range(4): dpp("v_add_f32", 40 + r, 40 + r, 40 + r, "row_ror:4")
    redhi([40, 41, 42, 43], [44, 45, 46, 47], "v_add_f32")
    A("s_lshl_b32 s38, s3, 6"); A("v_add_u32 v44, s38, v39")
    A("s_mov_b64 exec, 15")
    A(f"ds_write_b128 v44, v[40:43] offset:{L_RED}")
    A("s_waitcnt lgkmcnt(0)")
    A("s_barrier")
    A("s_cmp_lg_u32 s3, 0")
    A("s_cbranch_scc1 L_noep")
    for k in range(1, 4): A(f"ds_read_b128 v[{40+4*k}:{43+4*k}], v39 offset:{L_RED + 64*k}")
    A("v_lshlrev_b32 v56, 16, v100"); A("v_and_b32 v57, s60, v100"); A("v_lshlrev_b32 v58, 16, v101"); A("v_and_b32 v59, s60, v101")
    A("v_mov_b32 v62, s63")
    A("s_waitcnt lgkmcnt(0)")
    for r in range(4):
        A(f"v_add_f32 v{40+r}, v{40+r}, v{44+r}"); A(f"v_add_f32 v{48+r}, v{48+r}, v{52+r}")
    for r in range(4): A(f"v_add_f32 v{40+r}, v{40+r}, v{48+r}")
    for r in range(4): A(f"v_add_f32 v{40+r}, v{56+r}, v{40+r}")
    A("v_cvt_pk_bf16_f32 v40, v40, v41"); A("v_cvt_pk_bf16_f32 v41, v42, v43")
    A("buffer_store_dwordx2 v[40:41], v61, s[24:27], s90 offen")
    A("s_cmp_lg_u32 s2, 0")
    A("s_cbranch_scc1 L_noep")
    A("s_mov_b64 exec, 1")
    A("buffer_store_dword v62, v21, s[16:19], 0 offen")
    if dbgtime:
        A("s_memrealtime s[42:43]"); srd(28, 84, 256); A("s_waitcnt lgkmcnt(0)")
        A("s_sub_u32 s42, s42, s40"); A("v_mov_b32 v45, s42"); A("buffer_store_dword v45, v21, s[28:31], 0 offen")
    A("L_noep:")
    A("s_mov_b64 exec, -1")
    A("s_branch L_fin")

    A("L_helper:")
    inS[0] = False
    A(f"s_setprio {hprio}")
    if x_nohelper:
        A("s_waitcnt lgkmcnt(0)"); srd(16, 86, WS_BYTES); A("s_barrier"); A("s_branch L_noffn")
    A("v_lshlrev_b32 v1, 2, v0")
    A("v_mul_u32_u24 v2, 12288, v36"); A("v_add_u32 v2, v2, v38")
    A(f"s_mul_i32 s7, s6, {80*12288}"); A("s_mul_i32 s38, s5, 384"); A("s_add_u32 s7, s7, s38")
    A("s_waitcnt lgkmcnt(0)")
    if fb: A("s_mov_b32 s98, s28")
    if pre & 16: A("s_load_dword s63, s[86:87], 0")
    srd(8, 64, 1280)
    srd(20, 70, 640 * 6144 * 2)
    for k in range(5): A(f"buffer_load_dword v{40+k}, v1, s[8:11], 0 offen offset:{256*k}")
    WQ = 100
    if warm:
        srd(16, 86, WS_BYTES)
        srd(24, 76, 640 * 1536 * 2); srd(28, 78, 640 * 1536 * 2); srd(32, 80, 1536 * 640 * 2)
        srd(12, 72, 6144 * 640 * 2)
        A("v_mov_b32 v90, 0")
        A("s_mov_b64 exec, 1")
        A(f"s_lshl_b32 s38, s4, 10"); A(f"s_add_u32 s38, s38, {QX}")
        A("buffer_load_dword v91, v90, s[16:19], s38 offen sc1")
        if warm > 1:
            A(f"s_mul_i32 s38, s6, {80*3072}")
            A("buffer_load_dword v92, v90, s[24:27], s38 offen nt")
            A("buffer_load_dword v93, v90, s[28:31], s38 offen nt")
            A(f"s_mul_i32 s38, s4, {6*1280}")
            A("buffer_load_dword v94, v90, s[32:35], s38 offen nt")
            A(f"s_mul_i32 s38, s4, {24*1280}")
            A("buffer_load_dword v95, v90, s[12:15], s38 offen nt")
        if warm > 2:
            srd(12, 68, 201326592)
            A(f"s_mul_i32 s38, s5, {16384*384}")
            for pg in range(4):
                A(f"buffer_load_dword v96, v90, s[12:15], s38 offen nt")
                A(f"s_add_u32 s38, s38, {(2<<20) - 64}")
            srd(12, 66, 201326592)
            A(f"s_mul_i32 s38, s5, {16384*384}")
            for pg in range(3):
                A(f"s_add_u32 s38, s38, {(2<<20) - 64}")
                A(f"buffer_load_dword v96, v90, s[12:15], s38 offen nt")
        A("s_mov_b64 exec, -1")
    if x_nowq: A("v_mov_b32 v2, 0x40000000")
    for gq in range(10):
        if gq: A(f"s_add_u32 s7, s7, {8*12288}")
        for it in range(3):
            r = WQ + 12 * gq + 4 * it
            if 3 * gq + it >= wqd: A(f"s_waitcnt vmcnt({wqd - 1})")
            A(f"buffer_load_dwordx4 v[{r}:{r+3}], v2, s[20:23], s7 offen offset:{128*it} {pol}")
    if not (pre & 16): A("s_load_dword s63, s[86:87], 0")
    srd(16, 86, WS_BYTES)
    srd(24, 76, 640 * 1536 * 2); srd(28, 78, 640 * 1536 * 2); srd(32, 80, 1536 * 640 * 2)
    npw = 0
    def touch_addr():
        A("v_lshlrev_b32 v75, 14, v0"); A("s_lshl_b32 s38, s4, 6"); A(f"s_add_u32 s38, s38, {YX}"); A("v_add_u32 v75, s38, v75")
        A("v_lshlrev_b32 v94, 10, v37"); A("s_lshl_b32 s38, s5, 13"); A(f"s_add_u32 s38, s38, {OX}"); A("v_add_u32 v94, s38, v94")
        A("v_cmp_lt_u32 vcc, 39, v0"); nop(1); A("v_cndmask_b32 v75, v75, v94, vcc")
        A("v_and_b32 v94, 15, v0"); A("v_lshlrev_b32 v94, 10, v94"); A("s_min_u32 s38, s2, 39"); A("s_lshl_b32 s38, s38, 14"); A(f"s_add_u32 s38, s38, {YX}"); A("v_add_u32 v94, s38, v94")
        A("v_cmp_lt_u32 vcc, 47, v0"); nop(1); A("v_cndmask_b32 v75, v75, v94, vcc")
    if pre & (32 | 64 | 128): touch_addr()
    if pre & 32:
        A("buffer_load_dword v99, v75, s[16:19], 0 offen sc1"); npw = 1
    if pre & 16:
        A("v_lshlrev_b32 v22, 4, v0")
        A("v_lshlrev_b32 v23, 10, v36"); A("v_add_u32 v23, v23, v38")
        A(f"s_lshl_b32 s38, s4, 10"); A(f"s_add_u32 s38, s38, {QX}")
        A("s_lshl_b32 s56, s5, 13"); A("s_lshl_b32 s39, s6, 7"); A("s_add_u32 s56, s56, s39"); A(f"s_add_u32 s56, s56, {FX}")
        A("s_waitcnt lgkmcnt(0)")
        for r in range(96, 100): A(f"v_mov_b32 v{r}, s63")
        A("buffer_store_dwordx4 v[96:99], v22, s[16:19], s38 offen sc1")
        A("buffer_store_dwordx4 v[96:99], v23, s[16:19], s56 offen sc1")
        npw = 2
    A(f"s_waitcnt vmcnt({30 + npw})")
    for k in range(5):
        A(f"v_lshlrev_b32 v{50+2*k}, 16, v{40+k}"); A(f"v_and_b32 v{51+2*k}, s60, v{40+k}")
    A("v_add_f32 v45, v50, v51")
    for k in range(2, 10): A(f"v_add_f32 v45, v45, v{50+k}")
    red8([45], "v_add_f32"); redhi([45], [46], "v_add_f32")
    A(f"v_mul_f32 v45, {f2u(1/640):#x}, v45")
    A("v_sub_f32 v47, v50, v45"); A("v_mul_f32 v46, v47, v47")
    for k in range(1, 10):
        A(f"v_sub_f32 v47, v{50+k}, v45"); A("v_fmac_f32 v46, v47, v47")
    red8([46], "v_add_f32"); redhi([46], [47], "v_add_f32")
    A(f"v_mul_f32 v46, {f2u(1/640):#x}, v46")
    bfr(45, 45); bfr(46, 46)
    A(f"v_add_f32 v46, {f2u(1e-5):#x}, v46"); bfr(46, 46)
    A("v_sqrt_f32 v46, v46"); nop(0); bfr(46, 46)
    A("v_rcp_f32 v47, v46")
    for k in range(10):
        A(f"v_sub_f32 v{50+k}, v{50+k}, v45"); bfr(50 + k, 50 + k)
    for k in range(10):
        A(f"v_mul_f32 v48, v{50+k}, v47")
        A(f"v_fma_f32 v49, -v48, v46, v{50+k}")
        A(f"v_fma_f32 v{50+k}, v49, v47, v48")
    for k in range(5):
        A(f"v_cvt_pk_bf16_f32 v{40+k}, v{50+2*k}, v{51+2*k}")
        A(f"ds_write_b32 v1, v{40+k} offset:{L_XN + 256*k}")
    A("s_mul_i32 s38, s6, 160"); A("v_lshlrev_b32 v3, 1, v36"); A("v_add_u32 v3, s38, v3")
    for gq in range(10): A(f"ds_read_u16 v{60+gq}, v3 offset:{L_XN + 16*gq}")
    A("v_lshrrev_b32 v20, 5, v0"); A("v_mul_u32_u24 v20, 768, v20")
    A("v_lshlrev_b32 v21, 5, v37"); A("v_add_u32 v20, v20, v21")
    A("v_and_b32 v21, 16, v0"); A("v_add_u32 v20, v20, v21")
    A("v_mul_u32_u24 v21, 12, v0"); A(f"v_add_u32 v21, {L_TMP}, v21")
    A("v_lshlrev_b32 v22, 4, v0")
    A("s_waitcnt lgkmcnt(0)")
    A("s_add_u32 s63, s63, 0x9E3779B9")
    A("s_xor_b32 s63, s63, 1")
    for gq in range(10): A(f"v_lshl_or_b32 v{60+gq}, v{60+gq}, 16, v{60+gq}")
    for gq in range(10):
        sel = 28 if gq % 2 == 0 else 32
        for r in range(4): A(f"v_and_b32 v{sel+r}, v{60+gq}, v{4+r}")
        A(f"s_waitcnt vmcnt({27 - 3*gq + (npw if gq < 9 else 0)})")
        nop(0)
        for it in range(3):
            r = WQ + 12 * gq + 4 * it
            c = "0" if gq == 0 else f"v[{8+4*it}:{11+4*it}]"
            A(f"v_mfma_f32_16x16x32_bf16 v[{8+4*it}:{11+4*it}], v[{sel}:{sel+3}], v[{r}:{r+3}], {c}")
    stamp(1)
    A(f"s_lshl_b32 s38, s4, 10"); A(f"s_add_u32 s38, s38, {QX}")
    A(f"s_lshl_b32 s91, s5, 13"); A(f"s_add_u32 s91, s91, {QX}"); A("s_add_u32 s92, s91, 4096")
    A("v_mov_b32 v43, s63")
    nop(3)
    A("s_mov_b64 exec, s[36:37]")
    for it in range(3): A(f"ds_write_b128 v20, v[{8+4*it}:{11+4*it}] offset:{L_TMP + 256*it}")
    A("s_mov_b64 exec, -1")
    for e in range(3): A(f"ds_read2_b32 v[{44+2*e}:{45+2*e}], v21 offset0:{e} offset1:{e+192}")
    A("s_waitcnt lgkmcnt(0)")
    for e in range(3): A(f"v_add_f32 v{40+e}, v{44+2*e}, v{45+2*e}")
    if xq != 2: A("buffer_store_dwordx4 v[40:43], v22, s[16:19], s38 offen sc1" + (" nt" if xq == 5 else "") + (" sc0" if xq == 6 else ""))
    stamp(2)
    if xq in (3, 4):
        A("s_waitcnt vmcnt(0)")
        stamp(6)
        if xq == 3:
            for z in range(3): A("s_sleep 25")
            stamp(2)
    A(f"s_mov_b32 s38, {SPIN}")
    QM = [40 + 2 * p for p in range(8)] if not diag else [64 + 2 * p for p in range(8)]
    QM = [8, 10, 12, 14, 56, 58, 94, 96]
    for p in range(8): A(f"s_mov_b64 s[{QM[p]}:{QM[p]+1}], -1")
    A("L_pollq:")
    for p in range(8):
        A(f"s_mov_b64 exec, s[{QM[p]}:{QM[p]+1}]")
        A(f"buffer_load_dwordx4 v[{100+4*p}:{103+4*p}], v22, s[16:19], s{91 + p//4} offen offset:{1024*(p%4)} sc1")
    A("s_mov_b64 exec, -1")
    for p in range(8):
        A(f"s_waitcnt vmcnt({7-p})")
        A(f"v_cmp_ne_u32 s[{QM[p]}:{QM[p]+1}], s63, v{103+4*p}")
    A(f"s_or_b64 vcc, s[{QM[0]}:{QM[0]+1}], s[{QM[1]}:{QM[1]+1}]")
    for p in range(2, 8): A(f"s_or_b64 vcc, vcc, s[{QM[p]}:{QM[p]+1}]")
    if not x_nopollq:
      A("s_cbranch_scc0 L_gotq")
      if slq: A(f"s_sleep {slq}")
      A("s_sub_u32 s38, s38, 1")
      A("s_cbranch_scc0 L_pollq")
    A("L_gotq:")
    stamp(3)
    for p in range(1, 8):
        for e in range(3): A(f"v_add_f32 v{100+e}, v{100+e}, v{100+4*p+e}")
    A("v_cvt_pk_bf16_f32 v44, v100, v101"); A("v_cvt_pk_bf16_f32 v45, v102, v102")
    A("v_mul_u32_u24 v23, 6, v0")
    A(f"ds_write_b16 v23, v44 offset:{L_QBF}")
    A(f"ds_write_b16_d16_hi v23, v44 offset:{L_QBF+2}")
    A(f"ds_write_b16 v23, v45 offset:{L_QBF+4}")
    if fb == 2:
        A("v_lshlrev_b32 v70, 3, v0"); A("v_mov_b32 v72, s98"); A("v_mov_b32 v73, 0x1000"); A("v_mov_b32 v71, 0")
        A("s_mov_b64 exec, 15"); A(f"ds_write_b64 v70, v[72:73] offset:{L_REF}"); A("s_mov_b64 exec, -1")
        A("v_lshlrev_b32 v74, 4, v0"); A("s_lshl_b32 s99, s2, 4"); A(f"s_add_u32 s99, s99, {PX}"); A(f"s_mov_b32 s56, {PX}")
    A("s_waitcnt lgkmcnt(0)")
    A("s_barrier")
    A("s_setprio 0")
    stamp(4)
    nctl = [0]
    def ctl_publish():
        k = nctl[0]; nctl[0] += 1
        A(f"ds_read_b128 v[76:79], v71 offset:{L_PRG}"); A(f"ds_read_b128 v[80:83], v71 offset:{L_PRG+16}")
        A("s_lshl_b32 s57, s98, 2")
        A("s_waitcnt lgkmcnt(0)")
        A("v_readfirstlane_b32 s58, v77")
        A("v_add3_u32 v85, v76, v78, v80"); A("v_add_u32 v85, v85, v82"); A("v_subrev_u32 v85, s57, v85")
        A("v_add3_u32 v86, v77, v79, v81"); A("v_add_u32 v86, v86, v83")
        A("v_mov_b32 v84, s98"); A("v_cvt_f32_u32 v85, v85"); A("v_cvt_f32_u32 v86, v86"); A("v_mov_b32 v87, s63")
        A(f"s_cmp_ge_u32 s2, {nsamp}"); A(f"s_cbranch_scc1 L_nopub{k}")
        A("s_mov_b64 exec, 1")
        A("buffer_store_dwordx4 v[84:87], v71, s[16:19], s99 offen sc1")
        A("s_mov_b64 exec, -1")
        A(f"L_nopub{k}:")
        A("s_add_u32 s99, s99, 1024")
    def ctl_gather():
        k = nctl[0]; nctl[0] += 1
        A("v_mov_b32 v91, 0")
        if nsamp < 64: A(f"s_bfm_b64 exec, {nsamp}, 0")
        A(f"buffer_load_dwordx4 v[88:91], v74, s[16:19], s56 offen {gpol}")
        A("s_mov_b64 exec, -1")
        A("s_add_u32 s56, s56, 1024")
        A("s_waitcnt vmcnt(0)")
        if nsamp < 64: A(f"s_bfm_b64 exec, {nsamp}, 0")
        A("v_cmp_eq_u32 vcc, s63, v91")
        A("s_mov_b64 exec, -1")
        A("v_subrev_u32 v88, s98, v88"); A("v_cvt_f32_i32 v88, v88")
        A(f"s_cbranch_vccz L_noupd{k}")
        for r in range(88, 91): A(f"v_cndmask_b32 v{r}, 0, v{r}, vcc")
        A("v_cndmask_b32 v91, 0, 1.0, vcc")
        nop(0)
        red8([88, 89, 90, 91], "v_add_f32"); redhi([88, 89, 90, 91], [92, 93, 94, 95], "v_add_f32")
        A("v_rcp_f32 v90, v90"); A("v_rcp_f32 v91, v91")
        A(f"v_mul_f32 v89, {f2u(4096.0):#x}, v89")
        A("v_mul_f32 v89, v89, v90"); A("v_mul_f32 v88, v88, v91")
        A(f"v_add_f32 v88, {f2u(bias * 100):#x}, v88")
        A("v_cvt_i32_f32 v88, v88"); A("v_cvt_u32_f32 v89, v89")
        A("v_add_u32 v88, s98, v88")
        A("s_mov_b64 exec, 15"); A(f"ds_write_b64 v70, v[88:89] offset:{L_REF}"); A("s_mov_b64 exec, -1")
        A(f"L_noupd{k}:")
    def prewrite():
        A("s_not_b32 s39, s63")
        for r in range(96, 100): A(f"v_mov_b32 v{r}, s39")
        if pre & 4:
            A("s_lshl_b32 s38, s5, 13"); A("s_lshl_b32 s39, s6, 7"); A("s_add_u32 s38, s38, s39"); A(f"s_add_u32 s38, s38, {OX}")
            A("buffer_store_dwordx4 v[96:99], v23, s[16:19], s38 offen sc1")
        if pre & 8:
            A("v_lshrrev_b32 v94, 2, v0"); A("v_lshlrev_b32 v94, 14, v94"); A("v_and_b32 v95, 48, v74"); A("v_add_u32 v94, v94, v95")
            A(f"s_lshl_b32 s38, s4, 6"); A(f"s_add_u32 s38, s38, {YX}")
            for k in range(3):
                if k == 2: A("s_mov_b32 exec_hi, 0")
                A("buffer_store_dwordx4 v[96:99], v94, s[16:19], s38 offen sc1")
                A(f"s_add_u32 s38, s38, {16*16384}")
            A("s_mov_b64 exec, -1")
    if fb == 2: ctl_publish()
    if x_noffn: A("s_branch L_noffn")
    A("v_mul_u32_u24 v2, 3072, v36"); A("v_add_u32 v2, v2, v38")
    A("v_mov_b32 v24, 0x40000000")
    A("v_cmp_lt_u32 vcc, 5, v37"); nop(1)
    A("v_cndmask_b32 v2, v2, v24, vcc")
    A(f"s_mul_i32 s7, s6, {80*3072}"); A("s_mul_i32 s38, s5, 96"); A("s_add_u32 s7, s7, s38")
    def fissue(gq):
        if gq: A(f"s_add_u32 s7, s7, {8*3072}")
        A(f"buffer_load_dwordx4 v[{100+8*gq}:{103+8*gq}], v2, s[24:27], s7 offen {pol}")
        A(f"buffer_load_dwordx4 v[{104+8*gq}:{107+8*gq}], v2, s[28:31], s7 offen {pol}")
    for gq in range(FD): fissue(gq)
    for gq in range(10):
        sel = 28 if gq % 2 == 0 else 32
        for r in range(4): A(f"v_and_b32 v{sel+r}, v{60+gq}, v{4+r}")
        nis = min(gq + FD, 10)
        A(f"s_waitcnt vmcnt({2*(nis - gq - 1)})")
        if gq + FD < 10: fissue(gq + FD)
        else: nop(0)
        for m in range(2):
            r = 100 + 8 * gq + 4 * m
            c = "0" if gq == 0 else f"v[{8+4*m}:{11+4*m}]"
            A(f"v_mfma_f32_16x16x32_bf16 v[{8+4*m}:{11+4*m}], v[{sel}:{sel+3}], v[{r}:{r+3}], {c}")
    A("v_mul_u32_u24 v2, 1280, v36"); A("v_add_u32 v2, v2, v38")
    A("v_cmp_lt_u32 vcc, 5, v36"); nop(1)
    A("v_cndmask_b32 v2, v2, v24, vcc")
    A(f"s_mul_i32 s7, s4, {6*1280}")
    for lc in range(10):
        A(f"buffer_load_dwordx4 v[{200+4*lc}:{203+4*lc}], v2, s[32:35], s7 offen offset:{128*lc} {pol}")
    A("s_mov_b64 exec, s[36:37]")
    for m in range(2): A(f"ds_write_b128 v20, v[{8+4*m}:{11+4*m}] offset:{L_TMP + 256*m}")
    A("s_mov_b64 exec, -1")
    A("v_mul_u32_u24 v21, 6, v36"); A("v_add_u32 v21, v21, v37"); A("v_lshlrev_b32 v21, 2, v21"); A(f"v_add_u32 v21, {L_TMP}, v21")
    A("v_add_u32 v23, 256, v21")
    A("ds_read2_b32 v[44:45], v21 offset0:0 offset1:192")
    A("ds_read2_b32 v[46:47], v23 offset0:0 offset1:192")
    if not fcompact:
        A("v_lshlrev_b32 v23, 10, v36"); A("v_add_u32 v23, v23, v38")
        A("s_lshl_b32 s38, s5, 13"); A("s_lshl_b32 s39, s6, 7"); A("s_add_u32 s38, s38, s39"); A(f"s_add_u32 s38, s38, {FX}")
        A("v_cmp_gt_u32 vcc, 6, v37")
        A("s_waitcnt lgkmcnt(0)")
        A("v_add_f32 v40, v44, v45"); A("v_add_f32 v41, v46, v47")
        A("v_cndmask_b32 v40, 0, v40, vcc"); A("v_cndmask_b32 v41, 0, v41, vcc")
        A("v_mov_b32 v42, 0")
        A("buffer_store_dwordx4 v[40:43], v23, s[16:19], s38 offen sc1")
        A("v_lshlrev_b32 v22, 7, v37"); A("v_lshlrev_b32 v25, 4, v36"); A("v_add_u32 v22, v22, v25")
        A(f"s_lshl_b32 s91, s4, 10"); A(f"s_add_u32 s91, s91, {FX}")
        A(f"s_mov_b32 s38, {SPIN}")
        A("s_waitcnt vmcnt(0)")
        if fb == 2: ctl_gather()
        else: A("s_sleep 40")
        A("L_pollf:")
        A("buffer_load_dwordx4 v[44:47], v22, s[16:19], s91 offen sc1")
        A("s_waitcnt vmcnt(0)")
        A("v_cmp_ne_u32 vcc, s63, v47")
        A("s_mov_b64 exec, vcc")
        A("s_cbranch_execz L_gotf")
        A("s_sleep 32")
        A("s_sub_u32 s38, s38, 1")
        A("s_cbranch_scc0 L_pollf")
        A("L_gotf:")
        A("s_mov_b64 exec, -1")
    else:
        A("v_mul_u32_u24 v25, 48, v36"); A("v_lshlrev_b32 v26, 3, v37"); A("v_add_u32 v25, v25, v26")
        A(f"s_mul_i32 s38, s4, 384"); A(f"s_add_u32 s38, s38, {FX}")
        A("s_and_b32 s94, s63, 0xff"); A("v_mov_b32 v27, s94"); A("s_mul_i32 s94, s94, 0x01010101")
        A("s_mov_b32 s95, 0xffffff00"); A("s_mov_b32 s100, 0x0c0c0400"); A("s_mov_b32 s101, 0x0c040100"); A("s_mov_b32 s59, 0x04020100")
        A("s_waitcnt lgkmcnt(0)")
        A("v_add_f32 v40, v44, v45"); A("v_add_f32 v41, v46, v47")
        A("v_and_or_b32 v40, v40, s95, v27"); A("v_and_or_b32 v41, v41, s95, v27")
        A("v_mul_u32_u24 v22, 384, v37"); A("v_lshrrev_b32 v26, 1, v36"); A("v_lshlrev_b32 v26, 4, v26"); A("v_add_u32 v22, v22, v26")
        A("v_mov_b32_dpp v42, v40 quad_perm:[1,0,3,2] row_mask:0xf bank_mask:0xf")
        A("v_mov_b32_dpp v43, v41 quad_perm:[1,0,3,2] row_mask:0xf bank_mask:0xf")
        A("s_mov_b32 exec_lo, 0x15151515"); A("s_mov_b32 exec_hi, 0x15151515")
        A("buffer_store_dwordx4 v[40:43], v25, s[16:19], s38 offen sc1")
        A("s_mov_b64 exec, -1")
        A("v_lshlrev_b32 v23, 10, v36"); A("v_add_u32 v23, v23, v38")
        A("s_mul_i32 s91, s5, 3072"); A("s_mul_i32 s38, s6, 48"); A("s_add_u32 s91, s91, s38"); A(f"s_add_u32 s91, s91, {FX}")
        for r in range(44, 48): A(f"v_mov_b32 v{r}, 0")
        A("s_waitcnt vmcnt(0)")
        if fb == 2: ctl_gather()
        else: A("s_sleep 40")
        A(f"s_mov_b32 s38, {SPIN}")
        A("s_mov_b32 exec_hi, 0xffff")
        A("L_pollf:")
        A("buffer_load_dwordx4 v[44:47], v22, s[16:19], s91 offen sc1")
        A("s_waitcnt vmcnt(0)")
        tagword(48, 44)
        A("v_cmp_ne_u32 vcc, s94, v48")
        A("s_mov_b64 exec, vcc")
        A("s_cbranch_execz L_gotf")
        A("s_sleep 32")
        A("s_sub_u32 s38, s38, 1")
        A("s_cbranch_scc0 L_pollf")
        A("L_gotf:")
        A("s_mov_b64 exec, -1")
        A("s_mov_b32 vcc_lo, 0xff00ff00"); A("s_mov_b32 vcc_hi, 0xff00ff00")
        A("v_cndmask_b32 v44, v44, v46, vcc"); A("v_cndmask_b32 v45, v45, v47, vcc")
        A("v_and_b32 v44, s95, v44"); A("v_and_b32 v45, s95, v45")
        nop(0)
    red8([44, 45], "v_add_f32")
    bfr(44, 44); bfr(45, 45)
    A("v_max_f32 v44, 0, v44")
    A("v_mul_f32 v44, v44, v45")
    A("v_cvt_pk_bf16_f32 v44, v44, v44")
    for r in range(4): A(f"v_and_b32 v{28+r}, v44, v{4+r}")
    nop(1)
    for lc in range(10):
        A(f"v_mfma_f32_16x16x32_bf16 v[{100+4*lc}:{103+4*lc}], v[28:31], v[{200+4*lc}:{203+4*lc}], 0")
    A("v_lshrrev_b32 v20, 5, v0"); A("v_mul_u32_u24 v20, 2560, v20")
    A("v_lshlrev_b32 v21, 5, v37"); A("v_add_u32 v20, v20, v21")
    A("v_and_b32 v21, 16, v0"); A("v_add_u32 v20, v20, v21")
    nop(3)
    A("s_mov_b64 exec, s[36:37]")
    for lc in range(10): A(f"ds_write_b128 v20, v[{100+4*lc}:{103+4*lc}] offset:{L_YF + 256*lc}")
    A("s_mov_b64 exec, -1")
    A("s_waitcnt lgkmcnt(0)")
    A("L_noffn:")
    stamp(5)
    if fb == 2:
        step = sched(rounds[3]) - sched(rounds[2])
        A(f"s_mov_b32 s59, {sched(rounds[1])}")
        A("s_mov_b32 s57, 0")
        A("L_ctl:")
        A(f"s_mov_b32 s38, {SPIN}")
        A("L_ctlw:")
        A(f"s_sleep {slc}")
        A(f"ds_read_b32 v77, v71 offset:{L_PRG+4}")
        A("s_waitcnt lgkmcnt(0)")
        A("v_cmp_le_u32 vcc, s59, v77")
        A("s_cbranch_vccnz L_ctlgo")
        A("s_sub_u32 s38, s38, 1")
        A("s_cbranch_scc0 L_ctlw")
        A("L_ctlgo:")
        A(f"s_cmp_eq_u32 s59, {sched(rounds[1])}")
        A("s_cbranch_scc1 L_ctlpub")
        ctl_gather()
        A("L_ctlpub:")
        if stg:
            A("s_lshr_b32 s38, s2, 3"); A(f"s_and_b32 s38, s38, {stg-1}"); A(f"s_mul_i32 s38, s38, {step}"); A(f"s_add_u32 s38, s38, {sched(rounds[1]) + stg0 * step}")
            A("s_cmp_lg_u32 s38, s59"); A("s_cbranch_scc1 L_nopw")
            if stgsl:
                A("s_lshr_b32 s38, s2, 3"); A(f"s_lshr_b32 s38, s38, {stg.bit_length()-1}")
                A("L_stgsl:"); A(f"s_sleep {stgsl}"); A("s_sub_u32 s38, s38, 1"); A("s_cbranch_scc0 L_stgsl")
            prewrite()
            A("L_nopw:")
        if pre & 64: A("buffer_load_dword v99, v75, s[16:19], 0 offen sc1")
        if pre & 128:
            A("s_lshr_b32 s38, s2, 3"); A("s_and_b32 s38, s38, 7"); A(f"s_mul_i32 s38, s38, {step}"); A(f"s_add_u32 s38, s38, {sched(rounds[1])}")
            A("s_cmp_lg_u32 s38, s59"); A("s_cbranch_scc1 L_notouch")
            A("buffer_load_dword v99, v75, s[16:19], 0 offen sc1")
            A("L_notouch:")
        A(f"s_add_u32 s59, s59, {step}")
        A(f"s_cmp_gt_u32 s59, {sched(rounds[-1]) + step // 2}")
        A("s_cbranch_scc1 L_ctlend")
        ctl_publish()
        A("s_branch L_ctl")
        A("L_ctlend:")
        if pre & 1:
            A(f"s_lshl_b32 s38, s4, 10"); A(f"s_add_u32 s38, s38, {OX}")
            A("buffer_load_dwordx4 v[96:99], v74, s[16:19], s38 offen sc1")
        if (pre & 12) and not stg: prewrite()
        if pre & 12: A("s_waitcnt vmcnt(0)")
        if pre & 2:
            A("s_cmp_ge_u32 s2, 40"); A("s_cbranch_scc1 L_nopre")
            A("v_lshlrev_b32 v95, 6, v0")
            A("s_lshl_b32 s38, s2, 14"); A(f"s_add_u32 s38, s38, {YX}")
            for k in range(4):
                A(f"buffer_load_dword v{100+k}, v95, s[16:19], s38 offen sc1"); A("s_add_u32 s38, s38, 4096")
            A("L_nopre:")
        if diag: A("v_readfirstlane_b32 s52, v89"); A("s_mov_b32 s53, 0")
    A("s_barrier")

    A("L_fin:")
    if diag:
        stamp(7)
        A("s_waitcnt lgkmcnt(0)")
        A("s_mul_i32 s38, s2, 5"); A("s_add_u32 s38, s38, s3"); A("s_lshl_b32 s38, s38, 6"); A(f"s_add_u32 s38, s38, {700<<20}")
        A("v_mov_b32 v6, 0")
        for j in range(8):
            A(f"v_mov_b32 v2, s{40+2*j}"); A(f"v_mov_b32 v3, s{41+2*j}")
            A(f"buffer_store_dwordx2 v[2:3], v6, s[16:19], s38 offen offset:{8*j}")
            nop(1)
    A("L_end:")
    A("s_endpgm")
    A('.section .rodata,"a"'); A(".p2align 6")
    A(f".amdhsa_kernel {NAME}_kernel")
    A("  .amdhsa_next_free_vgpr 256"); A("  .amdhsa_next_free_sgpr 102"); A("  .amdhsa_accum_offset 256")
    A("  .amdhsa_group_segment_fixed_size 0"); A("  .amdhsa_kernarg_size 96"); A("  .amdhsa_user_sgpr_count 2")
    A("  .amdhsa_user_sgpr_kernarg_segment_ptr 1"); A("  .amdhsa_system_sgpr_workgroup_id_x 1")
    A(".end_amdhsa_kernel")
    return "\n".join(L) + "\n"

if __name__ == "__main__":
    import ast
    out = sys.argv[1]
    kw = {}
    for a in sys.argv[2:]:
        k, v = a.split("=")
        try: v = ast.literal_eval(v)
        except Exception: pass
        kw[k] = v
    open(out, "w").write(gen(**kw))
```

```python
import sys, struct
NAME = "parallel_sum__gqa_block_cached__glu_gated_reglu__decode"

def f2u(x):
    return struct.unpack("<I", struct.pack("<f", x))[0]

HEADER = """; Kernarg layout for this problem (96 bytes, ptrs only, base s[0:1]):
"""

QX, FX, OX, MX, YX = 0x10000, 0x50000, 0x90000, 0xD0000, 0x100000
WS_BYTES = 805306368
L_XN, L_TMP, L_QBF, L_YF, L_PART, L_ML = 0, 1280, 2816, 3200, 8320, 14464
L_IN, L_RED, L_PRG, L_REF = 14592, 15616, 15872, 15904
LDS_BYTES = 15936
PX = 0xE0000
SPIN = 1 << 20

def gen(D=6, N=40, catch=3, diag=False, pol="nt", wo_early=60, D0=None, dbgtime=False, calib=0, x_nowq=False, x_nopollq=False, x_noffn=False, wqd=30, es=False, x_nohelper=False, hprio=3, warm=0, xq=4, np1=1, sl1=0, np2=1, sl2=0, thr2=24, FD=4, D2=None, sw=0, slq=4, fb=2, Dlo=5, Dhi=8, T=56.0, tau=0.1351, t1=7.2, per=12, fbstart=None, endhi=0, bias=0.3, nsamp=16, slc=8, rounds=(40, 76, 148, 220, 292, 364), gpol='sc1', pre=0, dl1=0, dl2=0, stg=0, stg0=0, stgsl=0, alias=1, fcompact=1, d0n=0, osc=0, dlt=0, dx=None, dry=0, chain=0, tl=0, xloc=0, dlq=0):
    OX = QX if alias else 0x90000
    L = []
    A = L.append
    def nop(n): A(f"s_nop {n}")
    def stamp(j, early=False):
        if es and inS[0] and j in (3, 5, 6) and not early: return
        if tl and inS[0] and j in (1, 2, 3) and not early: return
        if diag: A(f"s_memrealtime s[{40+2*j}:{41+2*j}]")
    inS = [True]
    def dpp(op, dst, src_dpp, src1, ctl, bank="0xf"):
        A(f"{op}_dpp v{dst}, v{src_dpp}, v{src1} {ctl} row_mask:0xf bank_mask:{bank}")
    def red8(regs, op):
        for ctl in ["quad_perm:[1,0,3,2]", "quad_perm:[2,3,0,1]", "row_half_mirror"]:
            if len(regs) < 3: nop(2 - len(regs) + 0) if len(regs) == 1 else nop(0)
            for r in regs: dpp(op, r, r, r, ctl)
    def redhi(regs, tmps, op, first="row_ror:8"):
        if len(regs) < 3: nop(1) if len(regs) == 1 else nop(0)
        for r in regs: dpp(op, r, r, r, first)
        for sw in ["v_permlane16_swap_b32", "v_permlane32_swap_b32"]:
            for r, t in zip(regs, tmps): A(f"v_mov_b32 v{t}, v{r}")
            nop(1)
            for r, t in zip(regs, tmps): A(f"{sw} v{t}, v{r}")
            for r, t in zip(regs, tmps): A(f"{op} v{r}, v{t}, v{r}")
    def bfr(dst, src):
        A(f"v_cvt_pk_bf16_f32 v{dst}, v{src}, v{src}")
        A(f"v_and_b32 v{dst}, s60, v{dst}")
    def tagword(dst, r):
        A(f"v_perm_b32 v{dst}, v{r+1}, v{r}, s100")
        A(f"v_perm_b32 v{dst}, v{r+2}, v{dst}, s101")
        A(f"v_perm_b32 v{dst}, v{r+3}, v{dst}, s59")
    def srd(d, p, nbytes):
        A(f"s_mov_b32 s{d}, s{p}"); A(f"s_mov_b32 s{d+1}, s{p+1}")
        A(f"s_mov_b32 s{d+2}, {nbytes}"); A(f"s_mov_b32 s{d+3}, 0x20000")

    def sched(I):
        n1 = 90
        tn = lambda n: T - (393 - n) * tau
        tgt = tn(I) if I >= n1 else t1 + (tn(n1) - t1) * (I - 40) / (n1 - 40)
        return int(round(tgt * 100))
    A(HEADER.rstrip())
    A(f"; @launch grid=(256,1,1) block=(320,1,1) lds={LDS_BYTES}")
    A('.amdgcn_target "amdgcn-amd-amdhsa--gfx950"')
    A(".text"); A(f".globl {NAME}_kernel"); A(".p2align 8"); A(f".type {NAME}_kernel,@function")
    A(f"{NAME}_kernel:")
    A("s_cmp_ge_u32 s2, 256")
    A("s_cbranch_scc1 L_end")
    A("s_load_dwordx16 s[64:79], s[0:1], 0")
    A("s_load_dwordx8 s[80:87], s[0:1], 64")
    if diag:
        for j in range(1, 8): A(f"s_mov_b64 s[{40+2*j}:{41+2*j}], 0")
    stamp(0)
    if dbgtime: A("s_memrealtime s[40:41]")
    if fb: A("s_memrealtime s[28:29]")
    A("v_lshrrev_b32 v1, 6, v0")
    A("v_and_b32 v0, 63, v0")
    A("v_readfirstlane_b32 s3, v1")
    A("s_and_b32 s4, s2, 7"); A("s_lshl_b32 s4, s4, 5"); A("s_lshr_b32 s5, s2, 3"); A("s_add_u32 s4, s4, s5")
    A("s_lshr_b32 s5, s4, 3"); A("s_and_b32 s6, s4, 7")
    A("s_mov_b32 s60, 0xffff0000")
    A(f"s_mov_b32 s61, {f2u(192 ** -0.5):#x}")
    A(f"s_mov_b32 s62, {f2u(1.4426950408889634):#x}")
    A("v_lshrrev_b32 v36, 3, v0")
    A("v_and_b32 v37, 7, v0")
    A("v_lshlrev_b32 v38, 4, v37")
    A("v_and_b32 v39, 1, v0")
    A("v_lshlrev_b32 v39, 4, v39")
    A("v_mov_b32 v34, 0xffff")
    A("v_lshlrev_b32 v39, v39, v34")
    A("v_lshrrev_b32 v35, 1, v37")
    for r in range(4):
        A(f"v_cmp_eq_u32 vcc, {r}, v35")
        nop(1)
        A(f"v_cndmask_b32 v{4+r}, 0, v39, vcc")
    A("s_mov_b32 s36, 0x00ff00ff"); A("s_mov_b32 s37, 0xff00ff00")
    A("s_cmp_eq_u32 s3, 4")
    A("s_cbranch_scc1 L_helper")

    A("v_mul_u32_u24 v1, 384, v36")
    A("v_add_u32 v1, v1, v38")
    HB = 16384 * 384
    if dx is None: dx = 4 * dlt
    rotated = bool(dlt or dx)
    def srd_kv(d, p):
        if not rotated: return srd(d, p, 201326592)
        A(f"s_add_u32 s{d}, s{p}, s31"); A(f"s_addc_u32 s{d+1}, s{p+1}, 0")
        A(f"s_mov_b32 s{d+2}, {HB}"); A(f"s_mov_b32 s{d+3}, 0x20000")
    if rotated:
        A(f"s_mul_i32 s31, s5, {HB}")
        A("s_and_b32 s7, s5, 3"); A(f"s_mul_i32 s7, s7, {dlt % 2048}"); A("s_lshr_b32 s38, s5, 2"); A(f"s_mul_i32 s38, s38, {dx % 2048}"); A("s_add_u32 s7, s7, s38")
        A("s_lshl_b32 s38, s6, 2"); A("s_add_u32 s38, s38, s3"); A("s_add_u32 s7, s7, s38"); A("s_and_b32 s7, s7, 2047"); A("s_mul_i32 s7, s7, 3072")
    else:
        A(f"s_mul_i32 s7, s5, {16384*384}")
        A("s_lshl_b32 s38, s6, 2"); A("s_add_u32 s38, s38, s3"); A("s_mul_i32 s38, s38, 3072")
        A("s_add_u32 s7, s7, s38")
    A("s_waitcnt lgkmcnt(0)")
    srd_kv(8, 66)
    SC0 = 40
    slots = [56 + 4 * i for i in range(12)] + [104 + 4 * i for i in range(37 if fb == 2 else 38)]
    early = set(slots[:12])
    free = list(slots)
    NK = 192; NV = 192; NWO = 9
    order = [("K", n) for n in range(NK)] + [("V", n) for n in range(NV)]
    pos = len(order) - wo_early
    order = order[:pos] + [("W", n) for n in range(NWO)] + order[pos:]
    slot_of = {}
    st = dict(I=0)
    def issue():
        kind, n = order[st["I"]]
        r = free.pop(0)
        slot_of[(kind, n)] = r
        if kind in "KV":
            g, it = divmod(n, 3)
            if it == 0 or (st["I"] > 0 and order[st["I"] - 1][0] == "W"):
                A(f"s_add_u32 s39, s7, {g * 98304}")
                if rotated and g:
                    A(f"s_sub_u32 s30, s39, {HB}"); A("s_min_u32 s39, s39, s30")
            s = "s[8:11]" if kind == "K" else "s[12:15]"
            A(f"buffer_load_dwordx4 v[{r}:{r+3}], v1, {s}, s39 offen offset:{128*it} {pol}")
        else:
            e, k = divmod(n, 3)
            vo = "v34" if k < 2 else "v35"
            A(f"buffer_load_dwordx4 v[{r}:{r+3}], {vo}, s[20:23], s{56+e} offen offset:{512*k} {pol}")
        st["I"] += 1
    idx = {o: i for i, o in enumerate(order)}
    landed = [0]
    def wait_for(count):
        if count > landed[0]:
            A(f"s_waitcnt vmcnt({st['I'] - count})")
            landed[0] = count
    if D0 is None: D0 = D
    def early_prewrite():
        srd(16, 86, WS_BYTES)
        for r in range(4): A(f"v_mov_b32 v{28+r}, {r}")
        A("v_lshrrev_b32 v32, 2, v0"); A("s_lshl_b32 s38, s3, 4"); A("v_add_u32 v32, s38, v32")
        A("v_cmp_gt_u32 vcc, 40, v32")
        A("v_lshlrev_b32 v32, 14, v32"); A("v_and_b32 v33, 48, v38"); A("v_add_u32 v32, v32, v33")
        A(f"s_lshl_b32 s38, s4, 6"); A(f"s_add_u32 s38, s38, {YX}")
        A("s_mov_b64 exec, vcc")
        A("buffer_store_dwordx4 v[28:31], v32, s[16:19], s38 offen sc1")
        A("s_mov_b64 exec, -1")
    if pre & 256: early_prewrite()
    for i in range(D0): issue()
    srd_kv(12, 68)
    srd(16, 86, WS_BYTES)
    srd(20, 72, 6144 * 640 * 2)
    srd(24, 82, 1280)
    A("s_load_dword s63, s[86:87], 0")
    A("s_min_u32 s38, s2, 39"); A("s_lshl_b32 s90, s38, 5")
    A("v_lshrrev_b32 v20, 5, v0"); A("v_mul_u32_u24 v20, 768, v20")
    A("v_lshlrev_b32 v21, 5, v37"); A("v_add_u32 v20, v20, v21")
    A("v_and_b32 v21, 16, v0"); A("v_add_u32 v20, v20, v21")
    A("s_mul_i32 s38, s3, 1536"); A("v_add_u32 v20, s38, v20")
    A("s_lshl_b32 s38, s3, 3"); A("v_mov_b32 v21, s38")
    A("v_lshlrev_b32 v22, 7, v37"); A("v_lshlrev_b32 v23, 4, v36"); A("v_add_u32 v22, v22, v23")
    A(f"s_lshl_b32 s91, s4, 10"); A(f"s_add_u32 s91, s91, {OX}")
    A("v_lshlrev_b32 v23, 10, v36"); A("v_add_u32 v23, v23, v38")
    A("s_lshl_b32 s92, s5, 13"); A("s_lshl_b32 s38, s6, 7"); A("s_add_u32 s92, s92, s38"); A(f"s_add_u32 s92, s92, {OX}")
    A("v_cmp_ne_u32 s[98:99], s6, v36")
    A("v_lshrrev_b32 v24, 5, v0"); A("v_lshlrev_b32 v24, 2, v24")
    A("v_and_b32 v25, 8, v0")
    A("v_cmp_ne_u32 vcc, 0, v25")
    nop(1)
    A("v_cndmask_b32 v24, v24, v25, vcc")
    A("v_add_u32 v24, s3, v24")
    A("v_lshlrev_b32 v25, 4, v24"); A("v_lshlrev_b32 v26, 1, v37"); A("v_add_u32 v25, v25, v26")
    A("v_bfe_u32 v26, v0, 4, 1"); A("v_add_u32 v25, v25, v26")
    A("v_lshrrev_b32 v26, 2, v25"); A("v_lshlrev_b32 v26, 14, v26")
    A("v_and_b32 v27, 3, v25"); A("v_lshlrev_b32 v27, 4, v27"); A("v_add_u32 v26, v26, v27")
    A("v_min_u32 v25, 159, v25"); A("v_lshlrev_b32 v25, 4, v25")
    A("v_and_b32 v27, 40, v0")
    A("v_cmp_eq_u32 vcc, 40, v27")
    A("v_cmp_lt_u32 s[96:97], 9, v24")
    A("s_or_b64 vcc, vcc, s[96:97]")
    A("v_mov_b32 v27, 0x40000000")
    nop(0)
    A("v_cndmask_b32 v26, v26, v27, vcc")
    A(f"s_lshl_b32 s93, s4, 6"); A(f"s_add_u32 s93, s93, {YX}")
    A("v_mul_u32_u24 v24, 24, v36"); A("v_add_u32 v24, v24, v37"); A("v_lshlrev_b32 v24, 2, v24")
    A(f"v_add_u32 v24, {L_PART}, v24")
    A("v_lshlrev_b32 v39, 4, v0")
    A("s_mov_b32 s95, 0xffffff00"); A("s_mov_b32 s100, 0x0c0c0400"); A("s_mov_b32 s101, 0x0c040100"); A("s_mov_b32 s59, 0x04020100")
    A("v_mul_u32_u24 v34, 1280, v36"); A("v_add_u32 v34, v34, v38")
    A("s_lshl_b32 s38, s3, 7"); A("v_add_u32 v34, s38, v34")
    A("s_cmp_ge_u32 s3, 2"); A("s_cselect_b32 s38, 0x40000000, 0"); A("v_add_u32 v35, s38, v34")
    A("s_mul_i32 s56, s4, 30720"); A("s_add_u32 s57, s56, 10240"); A("s_add_u32 s58, s56, 20480")
    A("v_mov_b32 v2, 0xff800000")
    A("v_mov_b32 v3, 0")
    dd = D0
    while st["I"] < N:
        if dd > D and st["I"] >= D0 + d0n: dd -= 1
        if dd < D and st["I"] >= 8:
            dd += 1
        else:
            wait_for(st["I"] - dd + 1)
            if es and landed[0] in (1, 11, 23): stamp({1: 3, 11: 5, 23: 6}[landed[0]], True)
        issue()
    A("s_waitcnt lgkmcnt(0)")
    A("s_add_u32 s63, s63, 0x9E3779B9")
    A("s_and_b32 s94, s63, 0xff"); A("v_mov_b32 v27, s94"); A("s_mul_i32 s94, s94, 0x01010101")
    if fb == 2:
        A("s_memrealtime s[88:89]"); A(f"v_mov_b32 v255, {sched(N)}"); A("s_waitcnt lgkmcnt(0)")
        A("v_mov_b32 v254, s88"); A(f"ds_write_b64 v21, v[254:255] offset:{L_PRG}"); A("s_waitcnt lgkmcnt(0)")
    stamp(1)
    A("s_barrier")
    for it in range(3): A(f"ds_read_b128 v[{8+4*it}:{11+4*it}], v38 offset:{L_QBF + 128*it}")
    A("s_waitcnt lgkmcnt(0)")
    stamp(2)

    def prep(g):
        A(f"v_fma_f32 v33, v{SC0+g}, s62, -v2")
        A("v_exp_f32 v33, v33")
        nop(0)
        A("v_add_f32 v3, v3, v33")
        A("v_cvt_pk_bf16_f32 v33, v33, v33")
        for r in range(4): A(f"v_and_b32 v{28+r}, v33, v{4+r}")
    ACC = [8, 12, 16]
    def consume(kind, n):
        r = slot_of[(kind, n)]
        g, it = divmod(n, 3)
        if kind == "K":
            for j in range(4):
                c = "0" if (it == 0 and j == 0) else "v32"
                A(f"v_dot2_f32_bf16 v32, v{r+j}, v{8+4*it+j}, {c}")
            if it == 2:
                nop(2)
                dpp("v_add_f32", 33, 32, 32, "quad_perm:[1,0,3,2]"); nop(1)
                dpp("v_add_f32", 33, 33, 33, "quad_perm:[2,3,0,1]"); nop(1)
                dpp("v_add_f32", 33, 33, 33, "row_half_mirror")
                bfr(33, 33)
                A("v_mul_f32 v33, s61, v33")
                A("v_cvt_pk_bf16_f32 v33, v33, v33")
                A(f"v_and_b32 v{SC0+g}, s60, v33")
                A(f"v_max_f32 v2, v2, v{SC0+g}")
        else:
            c = "0" if g == 0 else f"v[{ACC[it]}:{ACC[it]+3}]"
            A(f"v_mfma_f32_16x16x32_bf16 v[{ACC[it]}:{ACC[it]+3}], v[28:31], v[{r}:{r+3}], {c}")
            if it == 2 and g < 63:
                prep(g + 1)
                if g + 1 == 63:
                    redhi([3], [33], "v_add_f32")
                nop(1)
        if r not in early: free.append(r)
    def transition():
        stamp(3)
        redhi([2], [33], "v_max_f32")
        A("v_mul_f32 v2, s62, v2")
        prep(0)
        nop(1)
    work = [("K", n) for n in range(NK)] + [("T", 0)] + [("V", n) for n in range(NV)]
    wi = 0
    total = len(order)
    if fbstart is None: fbstart = N + 2
    while wi < len(work):
        cnt = 0
        while wi < len(work) and cnt < catch:
            k = work[wi]
            if k[0] == "T":
                transition(); wi += 1; cnt = catch; break
            if idx[k] < landed[0]:
                consume(*k); wi += 1; cnt += 1
            else:
                break
        if wi >= len(work): break
        if st["I"] < total and fb:
            I = st["I"]
            wait_for(I - Dhi + 1)
            if I < fbstart:
                A(f"s_waitcnt vmcnt({D-1})")
            elif I < total - endhi:
                A(f"s_cbranch_vccnz L_fb{I}"); A(f"s_waitcnt vmcnt({Dlo-1})"); A(f"L_fb{I}:")
            issue()
            if (I - fbstart + 2) % per == 0:
                A("s_memrealtime s[88:89]")
                if fb == 2: A(f"ds_read_b64 v[252:253], v21 offset:{L_REF}")
            if (I - fbstart + 1) % per == 0 and I > N:
                A("s_waitcnt lgkmcnt(0)")
                S = sched(I)
                if fb == 1:
                    A("s_sub_u32 s88, s88, s28")
                    A(f"s_cmp_gt_i32 s88, {S}")
                    A("s_cselect_b64 vcc, -1, 0")
                else:
                    A(f"v_mov_b32 v255, {S}")
                    A("v_mul_u32_u24 v253, v255, v253")
                    A("v_mov_b32 v254, s88")
                    A("v_lshrrev_b32 v253, 12, v253")
                    A(f"ds_write_b64 v21, v[254:255] offset:{L_PRG}")
                    A("v_add_u32 v253, v253, v252")
                    A("v_sub_u32 v253, v254, v253")
                    A("v_cmp_lt_i32 vcc, 0, v253")
        elif st["I"] < total:
            dcur = D2 if (D2 and st["I"] >= total - NWO - sw) else D
            wait_for(st["I"] - dcur + 1)
            issue()
            if st["I"] < total and st["I"] - landed[0] < dcur: issue()
            if all(o[0] == "W" for o in order[st["I"]:]) and idx[("V", NV - 1)] < landed[0] + 1:
                while st["I"] < total: issue()
        else:
            k = work[wi]
            if k[0] != "T": wait_for(idx[k] + 1)
    while st["I"] < total: issue()
    stamp(4)
    A(f"ds_write_b64 v21, v[2:3] offset:{L_ML}")
    A("s_mov_b64 exec, s[36:37]")
    nop(5)
    for it in range(3): A(f"ds_write_b128 v20, v[{ACC[it]}:{ACC[it]+3}] offset:{L_PART + 256*it}")
    A("s_mov_b64 exec, -1")
    A("s_waitcnt lgkmcnt(0)")
    A("s_barrier")
    stamp(5)
    A(f"ds_read_b128 v[84:87], v25 offset:{L_YF}")
    A(f"ds_read_b128 v[88:91], v25 offset:{L_YF+2560}")
    A("s_cmp_eq_u32 s3, 1")
    A("s_cbranch_scc1 L_poller1")
    A("s_cmp_lg_u32 s3, 0")
    A("s_cbranch_scc1 L_b3")
    A(f"ds_read_b128 v[40:43], v21 offset:{L_ML}")
    A(f"ds_read_b128 v[44:47], v21 offset:{L_ML+16}")
    for w in range(4):
        if w: A(f"v_add_u32 v{92+w}, {1536*w}, v24")
        for e in range(3):
            r = 48 + w * 6 + e * 2
            A(f"ds_read2_b32 v[{r}:{r+1}], v{92+w if w else 24} offset0:{8*e} offset1:{8*e+192}")
    A("s_waitcnt lgkmcnt(12)")
    A("v_max3_f32 v72, v40, v42, v44"); A("v_max_f32 v72, v72, v46")
    A("v_and_b32 v72, s95, v72")
    for w in range(4): A(f"v_sub_f32 v{40+2*w}, v{40+2*w}, v72")
    for w in range(4): A(f"v_exp_f32 v{40+2*w}, v{40+2*w}")
    A("s_mov_b32 vcc_lo, 0xaaaaaaaa"); A("s_mov_b32 vcc_hi, 0xaaaaaaaa")
    A("v_mul_f32 v73, v40, v41")
    for w in range(1, 4): A(f"v_fmac_f32 v73, v{40+2*w}, v{41+2*w}")
    A("v_cndmask_b32 v79, v72, v73, vcc")
    A("s_waitcnt lgkmcnt(0)")
    for w in range(4):
        for e in range(3):
            r = 48 + w * 6 + e * 2
            A(f"v_add_f32 v{r}, v{r}, v{r+1}")
    for e in range(3): A(f"v_mul_f32 v{76+e}, v40, v{48+e*2}")
    for w in range(1, 4):
        for e in range(3): A(f"v_fmac_f32 v{76+e}, v{40+2*w}, v{48+w*6+e*2}")
    for r in range(4): A(f"v_and_or_b32 v{76+r}, v{76+r}, s95, v27")
    A("s_mov_b64 exec, s[98:99]")
    A("buffer_store_dwordx4 v[76:79], v23, s[16:19], s92 offen" + ("" if xloc & 1 else " sc1"))
    if tl == 2: stamp(1, True)
    A("s_not_b64 exec, exec")
    A(f"ds_write_b128 v22, v[76:79] offset:{L_IN}")
    A("s_mov_b64 exec, -1")
    A("s_branch L_b3")
    A("L_poller1:")
    if dl1: A(f"s_sleep {dl1}")
    A("v_cmp_ne_u32 vcc, s6, v37")
    A("s_mov_b64 exec, vcc")
    A(f"s_mov_b32 s38, {SPIN}")
    for k in range(np1):
        if k: A(f"s_sleep {sl1}")
        A(f"buffer_load_dwordx4 v[{40+4*k}:{43+4*k}], v22, s[16:19], s91 offen sc1")
    if tl == 2: A("s_waitcnt vmcnt(0)"); stamp(2, True)
    A("L_poll1:")
    for k in range(np1):
        r = 40 + 4 * k
        A(f"s_waitcnt vmcnt({np1-1})")
        tagword(60, r)
        A("v_cmp_eq_u32 vcc, s94, v60")
        A("s_andn2_b64 s[96:97], exec, vcc")
        A("s_mov_b64 exec, vcc")
        A(f"ds_write_b128 v39, v[{r}:{r+3}] offset:{L_IN}")
        A("s_mov_b64 exec, s[96:97]")
        A("s_cbranch_execz L_got1")
        if np1 == 1 and sl1: A(f"s_sleep {sl1}")
        A("s_waitcnt lgkmcnt(0)")
        A(f"buffer_load_dwordx4 v[{r}:{r+3}], v22, s[16:19], s91 offen sc1")
    A("s_sub_u32 s38, s38, 1")
    A("s_cbranch_scc0 L_poll1")
    A("L_got1:")
    if tl == 2: stamp(3, True)
    A("s_mov_b64 exec, -1")
    A("L_b3:")
    A("s_waitcnt lgkmcnt(0)")
    A("s_barrier")
    A(f"ds_read_b128 v[92:95], v39 offset:{L_IN}")
    for r in range(4): A(f"v_add_f32 v{84+r}, v{84+r}, v{88+r}")
    stamp(6)
    A("s_waitcnt lgkmcnt(0)")
    A("v_and_b32 v95, s95, v95")
    for e in range(3): A(f"v_and_b32 v{92+e}, s95, v{92+e}")
    A("v_mov_b32 v96, v95"); A("v_mov_b32 v97, v95")
    nop(0)
    A("v_mov_b32_dpp v96, v95 row_ror:8 row_mask:0xf bank_mask:0xc")
    A("v_mov_b32_dpp v97, v95 row_ror:8 row_mask:0xf bank_mask:0x3")
    A("v_mov_b32 v98, v96")
    red8([98], "v_max_f32")
    A("v_sub_f32 v96, v96, v98")
    A("v_exp_f32 v96, v96")
    nop(0)
    A("v_mul_f32 v95, v96, v97")
    for e in range(3): A(f"v_mul_f32 v{92+e}, v96, v{92+e}")
    nop(0)
    red8([95, 92, 93, 94], "v_add_f32")
    A("v_rcp_f32 v95, v95")
    nop(0)
    for e in range(3): A(f"v_mul_f32 v{92+e}, v95, v{92+e}")
    for e in range(3): A(f"v_cvt_pk_bf16_f32 v{92+e}, v{92+e}, v{92+e}")
    for e in range(3):
        for r in range(4): A(f"v_and_b32 v{8+4*e+r}, v{92+e}, v{4+r}")
    if wo_early < max(D, Dhi, D2 or 0) + 12:
        A("s_cmp_eq_u32 s3, 0"); A("s_cbranch_scc1 L_wo0"); A("s_cmp_eq_u32 s3, 1"); A("s_cbranch_scc1 L_wo1")
        A("s_waitcnt vmcnt(0)"); A("L_wo0:"); A("s_waitcnt vmcnt(1)"); A("L_wo1:")
    else: nop(1)
    YA = [60, 64, 68]
    for e in range(3):
        for k in range(3):
            r = slot_of[("W", 3 * e + k)]
            c = "0" if e == 0 else f"v[{YA[k]}:{YA[k]+3}]"
            A(f"v_mfma_f32_16x16x32_bf16 v[{YA[k]}:{YA[k]+3}], v[{8+4*e}:{11+4*e}], v[{r}:{r+3}], {c}")
    nop(7)
    for r in range(4): A(f"v_permlane32_swap_b32 v{60+r}, v{64+r}")
    for r in range(4): A(f"v_mov_b32 v{72+r}, v{68+r}")
    nop(1)
    for r in range(4): A(f"v_permlane32_swap_b32 v{68+r}, v{72+r}")
    for r in range(4): dpp("v_add_f32", 76 + r, 64 + r, 60 + r, "row_ror:8")
    for r in range(4): dpp("v_add_f32", 76 + r, 68 + r, 72 + r, "row_ror:8", bank="0xc")
    for r in range(4): A(f"v_add_f32 v{76+r}, v{76+r}, v{84+r}")
    for r in range(4): A(f"v_and_or_b32 v{76+r}, v{76+r}, s95, v27")
    A("buffer_store_dwordx4 v[76:79], v26, s[16:19], s93 offen sc1")
    if tl == 1: stamp(1, True)
    if tl == 1: A("s_waitcnt vmcnt(0)"); stamp(2, True)
    A("s_cmp_ge_u32 s2, 40")
    A("s_cbranch_scc1 L_fin")
    A("s_lshl_b32 s91, s2, 14"); A("s_lshl_b32 s38, s3, 12"); A("s_add_u32 s91, s91, s38"); A(f"s_add_u32 s91, s91, {YX}")
    srd(8, 64, 1280)
    A("v_lshlrev_b32 v61, 3, v0")
    A("buffer_load_dwordx2 v[100:101], v61, s[8:11], s90 offen")
    for k in range(4): A(f"s_mov_b64 s[{28+2*k}:{29+2*k}], -1")
    if dry:
        A("s_mov_b64 s[56:57], 0")
        A("s_branch L_got2")
        A("L_real2:")
        A("s_mov_b64 s[56:57], 15")
    A(f"s_mov_b32 s38, {SPIN}")
    A("s_waitcnt vmcnt(0)")
    if dl2: A(f"s_sleep {dl2}")
    A("L_poll2:")
    for k in range(4):
        A(f"s_mov_b64 exec, s[{28+2*k}:{29+2*k}]")
        A(f"buffer_load_dwordx4 v[{40+4*k}:{43+4*k}], v39, s[16:19], s91 offen offset:{1024*k} sc1")
    A("s_mov_b64 exec, -1")
    for k in range(4):
        A(f"s_waitcnt vmcnt({3-k})")
        tagword(56 + k, 40 + 4 * k)
        A(f"v_cmp_ne_u32 s[{28+2*k}:{29+2*k}], s94, v{56+k}")
    A("s_or_b64 s[96:97], s[28:29], s[30:31]"); A("s_or_b64 vcc, s[32:33], s[34:35]"); A("s_or_b64 vcc, vcc, s[96:97]")
    A("s_cbranch_scc0 L_got2")
    if sl2:
        A("s_bcnt1_i32_b64 s39, vcc"); A(f"s_cmp_lt_u32 s39, {thr2}"); A("s_cbranch_scc1 L_nosl2"); A(f"s_sleep {sl2}"); A("L_nosl2:")
    A("s_sub_u32 s38, s38, 1")
    A("s_cbranch_scc0 L_poll2")
    A("L_got2:")
    if tl == 1: stamp(3, True)
    for r in range(40, 56): A(f"v_and_b32 v{r}, s95, v{r}")
    for r in range(4):
        A(f"v_add_f32 v{40+r}, v{40+r}, v{44+r}"); A(f"v_add_f32 v{48+r}, v{48+r}, v{52+r}")
    for r in range(4): A(f"v_add_f32 v{40+r}, v{40+r}, v{48+r}")
    for r in range(4): dpp("v_add_f32", 40 + r, 40 + r, 40 + r, "row_ror:4")
    redhi([40, 41, 42, 43], [44, 45, 46, 47], "v_add_f32")
    A("s_lshl_b32 s38, s3, 6"); A("v_add_u32 v44, s38, v39")
    A("s_mov_b64 exec, 15")
    A(f"ds_write_b128 v44, v[40:43] offset:{L_RED}")
    A("s_waitcnt lgkmcnt(0)")
    A("s_barrier")
    A("s_cmp_lg_u32 s3, 0")
    A("s_cbranch_scc1 L_noep")
    for k in range(1, 4): A(f"ds_read_b128 v[{40+4*k}:{43+4*k}], v39 offset:{L_RED + 64*k}")
    A("v_lshlrev_b32 v56, 16, v100"); A("v_and_b32 v57, s60, v100"); A("v_lshlrev_b32 v58, 16, v101"); A("v_and_b32 v59, s60, v101")
    A("v_mov_b32 v62, s63")
    A("s_waitcnt lgkmcnt(0)")
    for r in range(4):
        A(f"v_add_f32 v{40+r}, v{40+r}, v{44+r}"); A(f"v_add_f32 v{48+r}, v{48+r}, v{52+r}")
    for r in range(4): A(f"v_add_f32 v{40+r}, v{40+r}, v{48+r}")
    for r in range(4): A(f"v_add_f32 v{40+r}, v{56+r}, v{40+r}")
    A("v_cvt_pk_bf16_f32 v40, v40, v41"); A("v_cvt_pk_bf16_f32 v41, v42, v43")
    if dry: A("s_mov_b64 exec, s[56:57]")
    A("buffer_store_dwordx2 v[40:41], v61, s[24:27], s90 offen" + (" sc1" if osc else ""))
    A("s_cmp_lg_u32 s2, 0")
    A("s_cbranch_scc1 L_noep")
    A("s_and_b64 exec, exec, 1")
    A("buffer_store_dword v62, v21, s[16:19], 0 offen" + (" sc1" if osc else ""))
    if dbgtime:
        A("s_memrealtime s[42:43]"); srd(28, 84, 256); A("s_waitcnt lgkmcnt(0)")
        A("s_sub_u32 s42, s42, s40"); A("v_mov_b32 v45, s42"); A("buffer_store_dword v45, v21, s[28:31], 0 offen")
    A("L_noep:")
    A("s_mov_b64 exec, -1")
    if dry:
        A("s_cmp_eq_u32 s56, 0"); A("s_cbranch_scc1 L_real2")
    if diag: A("s_branch L_fin")
    else: A("s_endpgm")

    A("L_helper:")
    inS[0] = False
    A(f"s_setprio {hprio}")
    if x_nohelper:
        A("s_waitcnt lgkmcnt(0)"); srd(16, 86, WS_BYTES); A("s_barrier"); A("s_branch L_noffn")
    A("v_lshlrev_b32 v1, 2, v0")
    A("v_mul_u32_u24 v2, 12288, v36"); A("v_add_u32 v2, v2, v38")
    A(f"s_mul_i32 s7, s6, {80*12288}"); A("s_mul_i32 s38, s5, 384"); A("s_add_u32 s7, s7, s38")
    A("s_waitcnt lgkmcnt(0)")
    if fb: A("s_mov_b32 s98, s28")
    if pre & 16: A("s_load_dword s63, s[86:87], 0")
    srd(8, 64, 1280)
    srd(20, 70, 640 * 6144 * 2)
    for k in range(5): A(f"buffer_load_dword v{40+k}, v1, s[8:11], 0 offen offset:{256*k}")
    WQ = 100
    if warm:
        srd(16, 86, WS_BYTES)
        srd(24, 76, 640 * 1536 * 2); srd(28, 78, 640 * 1536 * 2); srd(32, 80, 1536 * 640 * 2)
        srd(12, 72, 6144 * 640 * 2)
        A("v_mov_b32 v90, 0")
        A("s_mov_b64 exec, 1")
        A(f"s_lshl_b32 s38, s4, 10"); A(f"s_add_u32 s38, s38, {QX}")
        A("buffer_load_dword v91, v90, s[16:19], s38 offen sc1")
        if warm > 1:
            A(f"s_mul_i32 s38, s6, {80*3072}")
            A("buffer_load_dword v92, v90, s[24:27], s38 offen nt")
            A("buffer_load_dword v93, v90, s[28:31], s38 offen nt")
            A(f"s_mul_i32 s38, s4, {6*1280}")
            A("buffer_load_dword v94, v90, s[32:35], s38 offen nt")
            A(f"s_mul_i32 s38, s4, {24*1280}")
            A("buffer_load_dword v95, v90, s[12:15], s38 offen nt")
        if warm > 2:
            srd(12, 68, 201326592)
            A(f"s_mul_i32 s38, s5, {16384*384}")
            for pg in range(4):
                A(f"buffer_load_dword v96, v90, s[12:15], s38 offen nt")
                A(f"s_add_u32 s38, s38, {(2<<20) - 64}")
            srd(12, 66, 201326592)
            A(f"s_mul_i32 s38, s5, {16384*384}")
            for pg in range(3):
                A(f"s_add_u32 s38, s38, {(2<<20) - 64}")
                A(f"buffer_load_dword v96, v90, s[12:15], s38 offen nt")
        A("s_mov_b64 exec, -1")
    if x_nowq: A("v_mov_b32 v2, 0x40000000")
    for gq in range(10):
        if gq: A(f"s_add_u32 s7, s7, {8*12288}")
        for it in range(3):
            r = WQ + 12 * gq + 4 * it
            if 3 * gq + it >= wqd: A(f"s_waitcnt vmcnt({wqd - 1})")
            A(f"buffer_load_dwordx4 v[{r}:{r+3}], v2, s[20:23], s7 offen offset:{128*it} {pol}")
    if not (pre & 16): A("s_load_dword s63, s[86:87], 0")
    srd(16, 86, WS_BYTES)
    srd(24, 76, 640 * 1536 * 2); srd(28, 78, 640 * 1536 * 2); srd(32, 80, 1536 * 640 * 2)
    npw = 0
    def touch_addr():
        A("v_lshlrev_b32 v75, 14, v0"); A("s_lshl_b32 s38, s4, 6"); A(f"s_add_u32 s38, s38, {YX}"); A("v_add_u32 v75, s38, v75")
        A("v_lshlrev_b32 v94, 10, v37"); A("s_lshl_b32 s38, s5, 13"); A(f"s_add_u32 s38, s38, {OX}"); A("v_add_u32 v94, s38, v94")
        A("v_cmp_lt_u32 vcc, 39, v0"); nop(1); A("v_cndmask_b32 v75, v75, v94, vcc")
        A("v_and_b32 v94, 15, v0"); A("v_lshlrev_b32 v94, 10, v94"); A("s_min_u32 s38, s2, 39"); A("s_lshl_b32 s38, s38, 14"); A(f"s_add_u32 s38, s38, {YX}"); A("v_add_u32 v94, s38, v94")
        A("v_cmp_lt_u32 vcc, 47, v0"); nop(1); A("v_cndmask_b32 v75, v75, v94, vcc")
    if pre & (32 | 64 | 128): touch_addr()
    if pre & 32:
        A("buffer_load_dword v99, v75, s[16:19], 0 offen sc1"); npw = 1
    if pre & 16:
        A("v_lshlrev_b32 v22, 4, v0")
        A("v_lshlrev_b32 v23, 10, v36"); A("v_add_u32 v23, v23, v38")
        A(f"s_lshl_b32 s38, s4, 10"); A(f"s_add_u32 s38, s38, {QX}")
        A("s_lshl_b32 s56, s5, 13"); A("s_lshl_b32 s39, s6, 7"); A("s_add_u32 s56, s56, s39"); A(f"s_add_u32 s56, s56, {FX}")
        A("s_waitcnt lgkmcnt(0)")
        for r in range(96, 100): A(f"v_mov_b32 v{r}, s63")
        A("v_mov_b32 v96, 0"); A("v_mov_b32 v97, 1")
        A("buffer_store_dwordx4 v[96:99], v22, s[16:19], s38 offen")
        A(f"s_mul_i32 s56, s4, 384"); A(f"s_add_u32 s56, s56, {FX}")
        A("s_bfm_b64 exec, 24, 0")
        A("buffer_store_dwordx4 v[96:99], v22, s[16:19], s56 offen")
        A("s_mov_b64 exec, -1")
        npw = 2
    A(f"s_waitcnt vmcnt({30 + npw})")
    for k in range(5):
        A(f"v_lshlrev_b32 v{50+2*k}, 16, v{40+k}"); A(f"v_and_b32 v{51+2*k}, s60, v{40+k}")
    A("v_add_f32 v45, v50, v51")
    for k in range(2, 10): A(f"v_add_f32 v45, v45, v{50+k}")
    red8([45], "v_add_f32"); redhi([45], [46], "v_add_f32")
    A(f"v_mul_f32 v45, {f2u(1/640):#x}, v45")
    A("v_sub_f32 v47, v50, v45"); A("v_mul_f32 v46, v47, v47")
    for k in range(1, 10):
        A(f"v_sub_f32 v47, v{50+k}, v45"); A("v_fmac_f32 v46, v47, v47")
    red8([46], "v_add_f32"); redhi([46], [47], "v_add_f32")
    A(f"v_mul_f32 v46, {f2u(1/640):#x}, v46")
    bfr(45, 45); bfr(46, 46)
    A(f"v_add_f32 v46, {f2u(1e-5):#x}, v46"); bfr(46, 46)
    A("v_sqrt_f32 v46, v46"); nop(0); bfr(46, 46)
    A("v_rcp_f32 v47, v46")
    for k in range(10):
        A(f"v_sub_f32 v{50+k}, v{50+k}, v45"); bfr(50 + k, 50 + k)
    for k in range(10):
        A(f"v_mul_f32 v48, v{50+k}, v47")
        A(f"v_fma_f32 v49, -v48, v46, v{50+k}")
        A(f"v_fma_f32 v{50+k}, v49, v47, v48")
    for k in range(5):
        A(f"v_cvt_pk_bf16_f32 v{40+k}, v{50+2*k}, v{51+2*k}")
        A(f"ds_write_b32 v1, v{40+k} offset:{L_XN + 256*k}")
    A("s_mul_i32 s38, s6, 160"); A("v_lshlrev_b32 v3, 1, v36"); A("v_add_u32 v3, s38, v3")
    for gq in range(10): A(f"ds_read_u16 v{60+gq}, v3 offset:{L_XN + 16*gq}")
    A("v_lshrrev_b32 v20, 5, v0"); A("v_mul_u32_u24 v20, 768, v20")
    A("v_lshlrev_b32 v21, 5, v37"); A("v_add_u32 v20, v20, v21")
    A("v_and_b32 v21, 16, v0"); A("v_add_u32 v20, v20, v21")
    A("v_mul_u32_u24 v21, 12, v0"); A(f"v_add_u32 v21, {L_TMP}, v21")
    A("v_lshlrev_b32 v22, 4, v0")
    A("s_waitcnt lgkmcnt(0)")
    A("s_add_u32 s63, s63, 0x9E3779B9")
    A("s_xor_b32 s63, s63, 1")
    for gq in range(10): A(f"v_lshl_or_b32 v{60+gq}, v{60+gq}, 16, v{60+gq}")
    for gq in range(10):
        sel = 28 if gq % 2 == 0 else 32
        for r in range(4): A(f"v_and_b32 v{sel+r}, v{60+gq}, v{4+r}")
        A(f"s_waitcnt vmcnt({27 - 3*gq + (npw if gq < 9 else 0)})")
        nop(0)
        for it in range(3):
            r = WQ + 12 * gq + 4 * it
            c = "0" if gq == 0 else f"v[{8+4*it}:{11+4*it}]"
            A(f"v_mfma_f32_16x16x32_bf16 v[{8+4*it}:{11+4*it}], v[{sel}:{sel+3}], v[{r}:{r+3}], {c}")
    stamp(1)
    A(f"s_lshl_b32 s38, s4, 10"); A(f"s_add_u32 s38, s38, {QX}")
    A(f"s_lshl_b32 s91, s5, 13"); A(f"s_add_u32 s91, s91, {QX}"); A("s_add_u32 s92, s91, 4096")
    A("v_mov_b32 v43, s63")
    nop(3)
    A("s_mov_b64 exec, s[36:37]")
    for it in range(3): A(f"ds_write_b128 v20, v[{8+4*it}:{11+4*it}] offset:{L_TMP + 256*it}")
    A("s_mov_b64 exec, -1")
    for e in range(3): A(f"ds_read2_b32 v[{44+2*e}:{45+2*e}], v21 offset0:{e} offset1:{e+192}")
    A("s_waitcnt lgkmcnt(0)")
    for e in range(3): A(f"v_add_f32 v{40+e}, v{44+2*e}, v{45+2*e}")
    if xq != 2: A("buffer_store_dwordx4 v[40:43], v22, s[16:19], s38 offen" + ("" if xloc & 4 else " sc1"))
    stamp(2)
    if xq in (3, 4):
        A("s_waitcnt vmcnt(0)")
        stamp(6)
        if dlq: A(f"s_sleep {dlq}")
        if xq == 3:
            for z in range(3): A("s_sleep 25")
            stamp(2)
    A(f"s_mov_b32 s38, {SPIN}")
    QM = [40 + 2 * p for p in range(8)] if not diag else [64 + 2 * p for p in range(8)]
    QM = [8, 10, 12, 14, 56, 58, 94, 96]
    for p in range(8): A(f"s_mov_b64 s[{QM[p]}:{QM[p]+1}], -1")
    A("L_pollq:")
    for p in range(8):
        A(f"s_mov_b64 exec, s[{QM[p]}:{QM[p]+1}]")
        A(f"buffer_load_dwordx4 v[{100+4*p}:{103+4*p}], v22, s[16:19], s{91 + p//4} offen offset:{1024*(p%4)} sc1")
    A("s_mov_b64 exec, -1")
    for p in range(8):
        A(f"s_waitcnt vmcnt({7-p})")
        A(f"v_cmp_ne_u32 s[{QM[p]}:{QM[p]+1}], s63, v{103+4*p}")
    A(f"s_or_b64 vcc, s[{QM[0]}:{QM[0]+1}], s[{QM[1]}:{QM[1]+1}]")
    for p in range(2, 8): A(f"s_or_b64 vcc, vcc, s[{QM[p]}:{QM[p]+1}]")
    if not x_nopollq:
      A("s_cbranch_scc0 L_gotq")
      if slq: A(f"s_sleep {slq}")
      A("s_sub_u32 s38, s38, 1")
      A("s_cbranch_scc0 L_pollq")
    A("L_gotq:")
    stamp(3)
    for p in range(1, 8):
        for e in range(3): A(f"v_add_f32 v{100+e}, v{100+e}, v{100+4*p+e}")
    A("v_cvt_pk_bf16_f32 v44, v100, v101"); A("v_cvt_pk_bf16_f32 v45, v102, v102")
    A("v_mul_u32_u24 v23, 6, v0")
    A(f"ds_write_b16 v23, v44 offset:{L_QBF}")
    A(f"ds_write_b16_d16_hi v23, v44 offset:{L_QBF+2}")
    A(f"ds_write_b16 v23, v45 offset:{L_QBF+4}")
    if fb == 2:
        A("v_lshlrev_b32 v70, 3, v0"); A("v_mov_b32 v72, s98"); A("v_mov_b32 v73, 0x1000"); A("v_mov_b32 v71, 0")
        A("s_mov_b64 exec, 15"); A(f"ds_write_b64 v70, v[72:73] offset:{L_REF}"); A("s_mov_b64 exec, -1")
        A("v_lshlrev_b32 v74, 4, v0"); A("s_lshl_b32 s99, s2, 4"); A(f"s_add_u32 s99, s99, {PX}"); A(f"s_mov_b32 s56, {PX}")
    A("s_waitcnt lgkmcnt(0)")
    A("s_barrier")
    A("s_setprio 0")
    stamp(4)
    nctl = [0]
    def ctl_publish():
        k = nctl[0]; nctl[0] += 1
        A(f"ds_read_b128 v[76:79], v71 offset:{L_PRG}"); A(f"ds_read_b128 v[80:83], v71 offset:{L_PRG+16}")
        A("s_lshl_b32 s57, s98, 2")
        A("s_waitcnt lgkmcnt(0)")
        A("v_readfirstlane_b32 s58, v77")
        A("v_add3_u32 v85, v76, v78, v80"); A("v_add_u32 v85, v85, v82"); A("v_subrev_u32 v85, s57, v85")
        A("v_add3_u32 v86, v77, v79, v81"); A("v_add_u32 v86, v86, v83")
        A("v_mov_b32 v84, s98"); A("v_cvt_f32_u32 v85, v85"); A("v_cvt_f32_u32 v86, v86"); A("v_mov_b32 v87, s63")
        A(f"s_cmp_ge_u32 s2, {nsamp}"); A(f"s_cbranch_scc1 L_nopub{k}")
        A("s_mov_b64 exec, 1")
        A("buffer_store_dwordx4 v[84:87], v71, s[16:19], s99 offen sc1")
        A("s_mov_b64 exec, -1")
        A(f"L_nopub{k}:")
        A("s_add_u32 s99, s99, 1024")
    def ctl_gather():
        k = nctl[0]; nctl[0] += 1
        A("v_mov_b32 v91, 0")
        if nsamp < 64: A(f"s_bfm_b64 exec, {nsamp}, 0")
        A(f"buffer_load_dwordx4 v[88:91], v74, s[16:19], s56 offen {gpol}")
        A("s_mov_b64 exec, -1")
        A("s_add_u32 s56, s56, 1024")
        A("s_waitcnt vmcnt(0)")
        if nsamp < 64: A(f"s_bfm_b64 exec, {nsamp}, 0")
        A("v_cmp_eq_u32 vcc, s63, v91")
        A("s_mov_b64 exec, -1")
        A("v_subrev_u32 v88, s98, v88"); A("v_cvt_f32_i32 v88, v88")
        A(f"s_cbranch_vccz L_noupd{k}")
        for r in range(88, 91): A(f"v_cndmask_b32 v{r}, 0, v{r}, vcc")
        A("v_cndmask_b32 v91, 0, 1.0, vcc")
        nop(0)
        red8([88, 89, 90, 91], "v_add_f32"); redhi([88, 89, 90, 91], [92, 93, 94, 95], "v_add_f32")
        A("v_rcp_f32 v90, v90"); A("v_rcp_f32 v91, v91")
        A(f"v_mul_f32 v89, {f2u(4096.0):#x}, v89")
        A("v_mul_f32 v89, v89, v90"); A("v_mul_f32 v88, v88, v91")
        A(f"v_add_f32 v88, {f2u(bias * 100):#x}, v88")
        A("v_cvt_i32_f32 v88, v88"); A("v_cvt_u32_f32 v89, v89")
        A("v_add_u32 v88, s98, v88")
        A("s_mov_b64 exec, 15"); A(f"ds_write_b64 v70, v[88:89] offset:{L_REF}"); A("s_mov_b64 exec, -1")
        A(f"L_noupd{k}:")
    def prewrite():
        A("s_not_b32 s39, s63")
        for r in range(96, 100): A(f"v_mov_b32 v{r}, s39")
        if pre & 4:
            A("s_lshl_b32 s38, s5, 13"); A("s_lshl_b32 s39, s6, 7"); A("s_add_u32 s38, s38, s39"); A(f"s_add_u32 s38, s38, {OX}")
            A("buffer_store_dwordx4 v[96:99], v23, s[16:19], s38 offen sc1")
        if pre & 8:
            A("v_lshrrev_b32 v94, 2, v0"); A("v_lshlrev_b32 v94, 14, v94"); A("v_and_b32 v95, 48, v74"); A("v_add_u32 v94, v94, v95")
            A(f"s_lshl_b32 s38, s4, 6"); A(f"s_add_u32 s38, s38, {YX}")
            for k in range(3):
                if k == 2: A("s_mov_b32 exec_hi, 0")
                A("buffer_store_dwordx4 v[96:99], v94, s[16:19], s38 offen sc1")
                A(f"s_add_u32 s38, s38, {16*16384}")
            A("s_mov_b64 exec, -1")
    if fb == 2: ctl_publish()
    if x_noffn: A("s_branch L_noffn")
    A("v_mul_u32_u24 v2, 3072, v36"); A("v_add_u32 v2, v2, v38")
    A("v_mov_b32 v24, 0x40000000")
    A("v_cmp_lt_u32 vcc, 5, v37"); nop(1)
    A("v_cndmask_b32 v2, v2, v24, vcc")
    A(f"s_mul_i32 s7, s6, {80*3072}"); A("s_mul_i32 s38, s5, 96"); A("s_add_u32 s7, s7, s38")
    def fissue(gq):
        if gq: A(f"s_add_u32 s7, s7, {8*3072}")
        A(f"buffer_load_dwordx4 v[{100+8*gq}:{103+8*gq}], v2, s[24:27], s7 offen {pol}")
        A(f"buffer_load_dwordx4 v[{104+8*gq}:{107+8*gq}], v2, s[28:31], s7 offen {pol}")
    for gq in range(FD): fissue(gq)
    for gq in range(10):
        sel = 28 if gq % 2 == 0 else 32
        for r in range(4): A(f"v_and_b32 v{sel+r}, v{60+gq}, v{4+r}")
        nis = min(gq + FD, 10)
        A(f"s_waitcnt vmcnt({2*(nis - gq - 1)})")
        if gq + FD < 10: fissue(gq + FD)
        else: nop(0)
        for m in range(2):
            r = 100 + 8 * gq + 4 * m
            c = "0" if gq == 0 else f"v[{8+4*m}:{11+4*m}]"
            A(f"v_mfma_f32_16x16x32_bf16 v[{8+4*m}:{11+4*m}], v[{sel}:{sel+3}], v[{r}:{r+3}], {c}")
    A("v_mul_u32_u24 v2, 1280, v36"); A("v_add_u32 v2, v2, v38")
    A("v_cmp_lt_u32 vcc, 5, v36"); nop(1)
    A("v_cndmask_b32 v2, v2, v24, vcc")
    A(f"s_mul_i32 s7, s4, {6*1280}")
    for lc in range(10):
        A(f"buffer_load_dwordx4 v[{200+4*lc}:{203+4*lc}], v2, s[32:35], s7 offen offset:{128*lc} {pol}")
    A("s_mov_b64 exec, s[36:37]")
    for m in range(2): A(f"ds_write_b128 v20, v[{8+4*m}:{11+4*m}] offset:{L_TMP + 256*m}")
    A("s_mov_b64 exec, -1")
    A("v_mul_u32_u24 v21, 6, v36"); A("v_add_u32 v21, v21, v37"); A("v_lshlrev_b32 v21, 2, v21"); A(f"v_add_u32 v21, {L_TMP}, v21")
    A("v_add_u32 v23, 256, v21")
    A("ds_read2_b32 v[44:45], v21 offset0:0 offset1:192")
    A("ds_read2_b32 v[46:47], v23 offset0:0 offset1:192")
    if not fcompact:
        A("v_lshlrev_b32 v23, 10, v36"); A("v_add_u32 v23, v23, v38")
        A("s_lshl_b32 s38, s5, 13"); A("s_lshl_b32 s39, s6, 7"); A("s_add_u32 s38, s38, s39"); A(f"s_add_u32 s38, s38, {FX}")
        A("v_cmp_gt_u32 vcc, 6, v37")
        A("s_waitcnt lgkmcnt(0)")
        A("v_add_f32 v40, v44, v45"); A("v_add_f32 v41, v46, v47")
        A("v_cndmask_b32 v40, 0, v40, vcc"); A("v_cndmask_b32 v41, 0, v41, vcc")
        A("v_mov_b32 v42, 0")
        A("buffer_store_dwordx4 v[40:43], v23, s[16:19], s38 offen sc1")
        A("v_lshlrev_b32 v22, 7, v37"); A("v_lshlrev_b32 v25, 4, v36"); A("v_add_u32 v22, v22, v25")
        A(f"s_lshl_b32 s91, s4, 10"); A(f"s_add_u32 s91, s91, {FX}")
        A(f"s_mov_b32 s38, {SPIN}")
        A("s_waitcnt vmcnt(0)")
        if fb == 2: ctl_gather()
        else: A("s_sleep 40")
        A("L_pollf:")
        A("buffer_load_dwordx4 v[44:47], v22, s[16:19], s91 offen sc1")
        A("s_waitcnt vmcnt(0)")
        A("v_cmp_ne_u32 vcc, s63, v47")
        A("s_mov_b64 exec, vcc")
        A("s_cbranch_execz L_gotf")
        A("s_sleep 32")
        A("s_sub_u32 s38, s38, 1")
        A("s_cbranch_scc0 L_pollf")
        A("L_gotf:")
        A("s_mov_b64 exec, -1")
    else:
        A("v_mul_u32_u24 v25, 48, v36"); A("v_lshlrev_b32 v26, 3, v37"); A("v_add_u32 v25, v25, v26")
        A(f"s_mul_i32 s38, s4, 384"); A(f"s_add_u32 s38, s38, {FX}")
        A("s_and_b32 s94, s63, 0xff"); A("v_mov_b32 v27, s94"); A("s_mul_i32 s94, s94, 0x01010101")
        A("s_mov_b32 s95, 0xffffff00"); A("s_mov_b32 s100, 0x0c0c0400"); A("s_mov_b32 s101, 0x0c040100"); A("s_mov_b32 s59, 0x04020100")
        A("s_waitcnt lgkmcnt(0)")
        A("v_add_f32 v40, v44, v45"); A("v_add_f32 v41, v46, v47")
        A("v_and_or_b32 v40, v40, s95, v27"); A("v_and_or_b32 v41, v41, s95, v27")
        A("v_mul_u32_u24 v22, 384, v37"); A("v_lshrrev_b32 v26, 1, v36"); A("v_lshlrev_b32 v26, 4, v26"); A("v_add_u32 v22, v22, v26")
        A("v_mov_b32_dpp v42, v40 quad_perm:[1,0,3,2] row_mask:0xf bank_mask:0xf")
        A("v_mov_b32_dpp v43, v41 quad_perm:[1,0,3,2] row_mask:0xf bank_mask:0xf")
        A("s_mov_b32 exec_lo, 0x15151515"); A("s_mov_b32 exec_hi, 0x15151515")
        A("buffer_store_dwordx4 v[40:43], v25, s[16:19], s38 offen" + ("" if xloc & 2 else " sc1"))
        A("s_mov_b64 exec, -1")
        A("v_lshlrev_b32 v23, 10, v36"); A("v_add_u32 v23, v23, v38")
        A("s_mul_i32 s91, s5, 3072"); A("s_mul_i32 s38, s6, 48"); A("s_add_u32 s91, s91, s38"); A(f"s_add_u32 s91, s91, {FX}")
        for r in range(44, 48): A(f"v_mov_b32 v{r}, 0")
        A("s_waitcnt vmcnt(0)")
        if fb == 2: ctl_gather()
        else: A("s_sleep 40")
        A(f"s_mov_b32 s38, {SPIN}")
        A("s_mov_b32 exec_hi, 0xffff")
        A("L_pollf:")
        A("buffer_load_dwordx4 v[44:47], v22, s[16:19], s91 offen sc1")
        A("s_waitcnt vmcnt(0)")
        tagword(48, 44)
        A("v_cmp_ne_u32 vcc, s94, v48")
        A("s_mov_b64 exec, vcc")
        A("s_cbranch_execz L_gotf")
        A("s_sleep 32")
        A("s_sub_u32 s38, s38, 1")
        A("s_cbranch_scc0 L_pollf")
        A("L_gotf:")
        A("s_mov_b64 exec, -1")
        A("s_mov_b32 vcc_lo, 0xff00ff00"); A("s_mov_b32 vcc_hi, 0xff00ff00")
        A("v_cndmask_b32 v44, v44, v46, vcc"); A("v_cndmask_b32 v45, v45, v47, vcc")
        A("v_and_b32 v44, s95, v44"); A("v_and_b32 v45, s95, v45")
        nop(0)
    red8([44, 45], "v_add_f32")
    bfr(44, 44); bfr(45, 45)
    A("v_max_f32 v44, 0, v44")
    A("v_mul_f32 v44, v44, v45")
    A("v_cvt_pk_bf16_f32 v44, v44, v44")
    for r in range(4): A(f"v_and_b32 v{28+r}, v44, v{4+r}")
    nop(1)
    for lc in range(10):
        A(f"v_mfma_f32_16x16x32_bf16 v[{100+4*lc}:{103+4*lc}], v[28:31], v[{200+4*lc}:{203+4*lc}], 0")
    A("v_lshrrev_b32 v20, 5, v0"); A("v_mul_u32_u24 v20, 2560, v20")
    A("v_lshlrev_b32 v21, 5, v37"); A("v_add_u32 v20, v20, v21")
    A("v_and_b32 v21, 16, v0"); A("v_add_u32 v20, v20, v21")
    nop(3)
    A("s_mov_b64 exec, s[36:37]")
    for lc in range(10): A(f"ds_write_b128 v20, v[{100+4*lc}:{103+4*lc}] offset:{L_YF + 256*lc}")
    A("s_mov_b64 exec, -1")
    A("s_waitcnt lgkmcnt(0)")
    A("L_noffn:")
    stamp(5)
    if fb == 2:
        step = sched(rounds[3]) - sched(rounds[2])
        A(f"s_mov_b32 s59, {sched(rounds[1])}")
        A("s_mov_b32 s57, 0")
        A("L_ctl:")
        A(f"s_mov_b32 s38, {SPIN}")
        A("L_ctlw:")
        A(f"s_sleep {slc}")
        A(f"ds_read_b32 v77, v71 offset:{L_PRG+4}")
        A("s_waitcnt lgkmcnt(0)")
        A("v_cmp_le_u32 vcc, s59, v77")
        A("s_cbranch_vccnz L_ctlgo")
        A("s_sub_u32 s38, s38, 1")
        A("s_cbranch_scc0 L_ctlw")
        A("L_ctlgo:")
        A(f"s_cmp_eq_u32 s59, {sched(rounds[1])}")
        A("s_cbranch_scc1 L_ctlpub")
        ctl_gather()
        A("L_ctlpub:")
        if stg:
            A("s_lshr_b32 s38, s2, 3"); A(f"s_and_b32 s38, s38, {stg-1}"); A(f"s_mul_i32 s38, s38, {step}"); A(f"s_add_u32 s38, s38, {sched(rounds[1]) + stg0 * step}")
            A("s_cmp_lg_u32 s38, s59"); A("s_cbranch_scc1 L_nopw")
            if stgsl:
                A("s_lshr_b32 s38, s2, 3"); A(f"s_lshr_b32 s38, s38, {stg.bit_length()-1}")
                A("L_stgsl:"); A(f"s_sleep {stgsl}"); A("s_sub_u32 s38, s38, 1"); A("s_cbranch_scc0 L_stgsl")
            prewrite()
            A("L_nopw:")
        if pre & 64: A("buffer_load_dword v99, v75, s[16:19], 0 offen sc1")
        if pre & 128:
            A("s_lshr_b32 s38, s2, 3"); A("s_and_b32 s38, s38, 7"); A(f"s_mul_i32 s38, s38, {step}"); A(f"s_add_u32 s38, s38, {sched(rounds[1])}")
            A("s_cmp_lg_u32 s38, s59"); A("s_cbranch_scc1 L_notouch")
            A("buffer_load_dword v99, v75, s[16:19], 0 offen sc1")
            A("L_notouch:")
        A(f"s_add_u32 s59, s59, {step}")
        A(f"s_cmp_gt_u32 s59, {sched(rounds[-1]) + step // 2}")
        A("s_cbranch_scc1 L_ctlend")
        ctl_publish()
        A("s_branch L_ctl")
        A("L_ctlend:")
        if pre & 1:
            A(f"s_lshl_b32 s38, s4, 10"); A(f"s_add_u32 s38, s38, {OX}")
            A("buffer_load_dwordx4 v[96:99], v74, s[16:19], s38 offen sc1")
        if (pre & 12) and not stg: prewrite()
        if pre & 12: A("s_waitcnt vmcnt(0)")
        if pre & 2:
            A("s_cmp_ge_u32 s2, 40"); A("s_cbranch_scc1 L_nopre")
            A("v_lshlrev_b32 v95, 6, v0")
            A("s_lshl_b32 s38, s2, 14"); A(f"s_add_u32 s38, s38, {YX}")
            for k in range(4):
                A(f"buffer_load_dword v{100+k}, v95, s[16:19], s38 offen sc1"); A("s_add_u32 s38, s38, 4096")
            A("L_nopre:")
        if diag: A("v_readfirstlane_b32 s52, v89"); A("s_mov_b32 s53, 0")
    A("s_barrier")

    A("L_fin:")
    if diag:
        stamp(7)
        A("s_waitcnt lgkmcnt(0)")
        A("s_mul_i32 s38, s2, 5"); A("s_add_u32 s38, s38, s3"); A("s_lshl_b32 s38, s38, 6"); A(f"s_add_u32 s38, s38, {700<<20}")
        A("v_mov_b32 v6, 0")
        for j in range(8):
            A(f"v_mov_b32 v2, s{40+2*j}"); A(f"v_mov_b32 v3, s{41+2*j}")
            A(f"buffer_store_dwordx2 v[2:3], v6, s[16:19], s38 offen offset:{8*j}")
            nop(1)
    A("L_end:")
    A("s_endpgm")
    A('.section .rodata,"a"'); A(".p2align 6")
    A(f".amdhsa_kernel {NAME}_kernel")
    A("  .amdhsa_next_free_vgpr 256"); A("  .amdhsa_next_free_sgpr 102"); A("  .amdhsa_accum_offset 256")
    A("  .amdhsa_group_segment_fixed_size 0"); A("  .amdhsa_kernarg_size 96"); A("  .amdhsa_user_sgpr_count 2")
    A("  .amdhsa_user_sgpr_kernarg_segment_ptr 1"); A("  .amdhsa_system_sgpr_workgroup_id_x 1")
    A(".end_amdhsa_kernel")
    return "\n".join(L) + "\n"

if __name__ == "__main__":
    import ast
    out = sys.argv[1]
    kw = {}
    for a in sys.argv[2:]:
        k, v = a.split("=")
        try: v = ast.literal_eval(v)
        except Exception: pass
        kw[k] = v
    open(out, "w").write(gen(**kw))
```

```python
import sys, struct
NAME = "parallel_sum__gqa_block_cached__glu_gated_reglu__decode"

def f2u(x):
    return struct.unpack("<I", struct.pack("<f", x))[0]

HEADER = """; Kernarg layout for this problem (96 bytes, ptrs only, base s[0:1]):
"""

QX, FX, OX, MX, YX = 0x10000, 0x50000, 0x90000, 0xD0000, 0x100000
WS_BYTES = 805306368
L_XN, L_TMP, L_QBF, L_YF, L_PART, L_ML = 0, 1280, 2816, 3200, 8320, 14464
L_IN, L_RED, L_PRG, L_REF = 14592, 15616, 15872, 15904
L_LOC = 15936
LDS_BYTES = 15952
PX = 0xE0000
SPIN = 1 << 20

def gen(D=6, N=40, catch=3, diag=False, pol="nt", wo_early=60, D0=None, dbgtime=False, calib=0, x_nowq=False, x_nopollq=False, x_noffn=False, wqd=30, es=False, x_nohelper=False, hprio=3, warm=0, xq=4, np1=1, sl1=0, np2=1, sl2=0, thr2=24, FD=4, D2=None, sw=0, slq=4, fb=2, Dlo=5, Dhi=8, T=56.0, tau=0.1351, t1=7.2, per=12, fbstart=None, endhi=0, bias=0.3, nsamp=16, slc=8, rounds=(40, 76, 148, 220, 292, 364), gpol='sc1', pre=0, dl1=0, dl2=0, stg=0, stg0=0, stgsl=0, alias=1, fcompact=1, d0n=0, osc=0, dlt=0, dx=None, dry=0, chain=0, tl=0, xloc=0, dlq=0, loc=3):
    OX = QX if alias else 0x90000
    L = []
    A = L.append
    def nop(n): A(f"s_nop {n}")
    def stamp(j, early=False):
        if es and inS[0] and j in (3, 5, 6) and not early: return
        if tl and inS[0] and j in (1, 2, 3) and not early: return
        if diag: A(f"s_memrealtime s[{40+2*j}:{41+2*j}]")
    inS = [True]
    def dpp(op, dst, src_dpp, src1, ctl, bank="0xf"):
        A(f"{op}_dpp v{dst}, v{src_dpp}, v{src1} {ctl} row_mask:0xf bank_mask:{bank}")
    def red8(regs, op):
        for ctl in ["quad_perm:[1,0,3,2]", "quad_perm:[2,3,0,1]", "row_half_mirror"]:
            if len(regs) < 3: nop(2 - len(regs) + 0) if len(regs) == 1 else nop(0)
            for r in regs: dpp(op, r, r, r, ctl)
    def redhi(regs, tmps, op, first="row_ror:8"):
        if len(regs) < 3: nop(1) if len(regs) == 1 else nop(0)
        for r in regs: dpp(op, r, r, r, first)
        for sw in ["v_permlane16_swap_b32", "v_permlane32_swap_b32"]:
            for r, t in zip(regs, tmps): A(f"v_mov_b32 v{t}, v{r}")
            nop(1)
            for r, t in zip(regs, tmps): A(f"{sw} v{t}, v{r}")
            for r, t in zip(regs, tmps): A(f"{op} v{r}, v{t}, v{r}")
    def bfr(dst, src):
        A(f"v_cvt_pk_bf16_f32 v{dst}, v{src}, v{src}")
        A(f"v_and_b32 v{dst}, s60, v{dst}")
    def tagword(dst, r):
        A(f"v_perm_b32 v{dst}, v{r+1}, v{r}, s100")
        A(f"v_perm_b32 v{dst}, v{r+2}, v{dst}, s101")
        A(f"v_perm_b32 v{dst}, v{r+3}, v{dst}, s59")
    def srd(d, p, nbytes):
        A(f"s_mov_b32 s{d}, s{p}"); A(f"s_mov_b32 s{d+1}, s{p+1}")
        A(f"s_mov_b32 s{d+2}, {nbytes}"); A(f"s_mov_b32 s{d+3}, 0x20000")

    def sched(I):
        n1 = 90
        tn = lambda n: T - (393 - n) * tau
        tgt = tn(I) if I >= n1 else t1 + (tn(n1) - t1) * (I - 40) / (n1 - 40)
        return int(round(tgt * 100))
    A(HEADER.rstrip())
    A(f"; @launch grid=(256,1,1) block=(320,1,1) lds={LDS_BYTES}")
    A('.amdgcn_target "amdgcn-amd-amdhsa--gfx950"')
    A(".text"); A(f".globl {NAME}_kernel"); A(".p2align 8"); A(f".type {NAME}_kernel,@function")
    A(f"{NAME}_kernel:")
    A("s_cmp_ge_u32 s2, 256")
    A("s_cbranch_scc1 L_end")
    A("s_load_dwordx16 s[64:79], s[0:1], 0")
    A("s_load_dwordx8 s[80:87], s[0:1], 64")
    if diag:
        for j in range(1, 8): A(f"s_mov_b64 s[{40+2*j}:{41+2*j}], 0")
    stamp(0)
    if dbgtime: A("s_memrealtime s[40:41]")
    if fb: A("s_memrealtime s[28:29]")
    A("v_lshrrev_b32 v1, 6, v0")
    A("v_and_b32 v0, 63, v0")
    A("v_readfirstlane_b32 s3, v1")
    A("s_and_b32 s4, s2, 7"); A("s_lshl_b32 s4, s4, 5"); A("s_lshr_b32 s5, s2, 3"); A("s_add_u32 s4, s4, s5")
    A("s_lshr_b32 s5, s4, 3"); A("s_and_b32 s6, s4, 7")
    A("s_mov_b32 s60, 0xffff0000")
    A(f"s_mov_b32 s61, {f2u(192 ** -0.5):#x}")
    A(f"s_mov_b32 s62, {f2u(1.4426950408889634):#x}")
    A("v_lshrrev_b32 v36, 3, v0")
    A("v_and_b32 v37, 7, v0")
    A("v_lshlrev_b32 v38, 4, v37")
    A("v_and_b32 v39, 1, v0")
    A("v_lshlrev_b32 v39, 4, v39")
    A("v_mov_b32 v34, 0xffff")
    A("v_lshlrev_b32 v39, v39, v34")
    A("v_lshrrev_b32 v35, 1, v37")
    for r in range(4):
        A(f"v_cmp_eq_u32 vcc, {r}, v35")
        nop(1)
        A(f"v_cndmask_b32 v{4+r}, 0, v39, vcc")
    A("s_mov_b32 s36, 0x00ff00ff"); A("s_mov_b32 s37, 0xff00ff00")
    A("s_cmp_eq_u32 s3, 4")
    A("s_cbranch_scc1 L_helper")

    A("v_mul_u32_u24 v1, 384, v36")
    A("v_add_u32 v1, v1, v38")
    HB = 16384 * 384
    if dx is None: dx = 4 * dlt
    rotated = bool(dlt or dx)
    def srd_kv(d, p):
        if not rotated: return srd(d, p, 201326592)
        A(f"s_add_u32 s{d}, s{p}, s31"); A(f"s_addc_u32 s{d+1}, s{p+1}, 0")
        A(f"s_mov_b32 s{d+2}, {HB}"); A(f"s_mov_b32 s{d+3}, 0x20000")
    if rotated:
        A(f"s_mul_i32 s31, s5, {HB}")
        A("s_and_b32 s7, s5, 3"); A(f"s_mul_i32 s7, s7, {dlt % 2048}"); A("s_lshr_b32 s38, s5, 2"); A(f"s_mul_i32 s38, s38, {dx % 2048}"); A("s_add_u32 s7, s7, s38")
        A("s_lshl_b32 s38, s6, 2"); A("s_add_u32 s38, s38, s3"); A("s_add_u32 s7, s7, s38"); A("s_and_b32 s7, s7, 2047"); A("s_mul_i32 s7, s7, 3072")
    else:
        A(f"s_mul_i32 s7, s5, {16384*384}")
        A("s_lshl_b32 s38, s6, 2"); A("s_add_u32 s38, s38, s3"); A("s_mul_i32 s38, s38, 3072")
        A("s_add_u32 s7, s7, s38")
    A("s_waitcnt lgkmcnt(0)")
    srd_kv(8, 66)
    SC0 = 40
    slots = [56 + 4 * i for i in range(12)] + [104 + 4 * i for i in range(37 if fb == 2 else 38)]
    early = set(slots[:12])
    free = list(slots)
    NK = 192; NV = 192; NWO = 9
    order = [("K", n) for n in range(NK)] + [("V", n) for n in range(NV)]
    pos = len(order) - wo_early
    order = order[:pos] + [("W", n) for n in range(NWO)] + order[pos:]
    slot_of = {}
    st = dict(I=0)
    def issue():
        kind, n = order[st["I"]]
        r = free.pop(0)
        slot_of[(kind, n)] = r
        if kind in "KV":
            g, it = divmod(n, 3)
            if it == 0 or (st["I"] > 0 and order[st["I"] - 1][0] == "W"):
                A(f"s_add_u32 s39, s7, {g * 98304}")
                if rotated and g:
                    A(f"s_sub_u32 s30, s39, {HB}"); A("s_min_u32 s39, s39, s30")
            s = "s[8:11]" if kind == "K" else "s[12:15]"
            A(f"buffer_load_dwordx4 v[{r}:{r+3}], v1, {s}, s39 offen offset:{128*it} {pol}")
        else:
            e, k = divmod(n, 3)
            vo = "v34" if k < 2 else "v35"
            A(f"buffer_load_dwordx4 v[{r}:{r+3}], {vo}, s[20:23], s{56+e} offen offset:{512*k} {pol}")
        st["I"] += 1
    idx = {o: i for i, o in enumerate(order)}
    landed = [0]
    def wait_for(count):
        if count > landed[0]:
            A(f"s_waitcnt vmcnt({st['I'] - count})")
            landed[0] = count
    if D0 is None: D0 = D
    def early_prewrite():
        srd(16, 86, WS_BYTES)
        for r in range(4): A(f"v_mov_b32 v{28+r}, {r}")
        A("v_lshrrev_b32 v32, 2, v0"); A("s_lshl_b32 s38, s3, 4"); A("v_add_u32 v32, s38, v32")
        A("v_cmp_gt_u32 vcc, 40, v32")
        A("v_lshlrev_b32 v32, 14, v32"); A("v_and_b32 v33, 48, v38"); A("v_add_u32 v32, v32, v33")
        A(f"s_lshl_b32 s38, s4, 6"); A(f"s_add_u32 s38, s38, {YX}")
        A("s_mov_b64 exec, vcc")
        A("buffer_store_dwordx4 v[28:31], v32, s[16:19], s38 offen sc1")
        A("s_mov_b64 exec, -1")
    if pre & 256: early_prewrite()
    for i in range(D0): issue()
    srd_kv(12, 68)
    srd(16, 86, WS_BYTES)
    srd(20, 72, 6144 * 640 * 2)
    srd(24, 82, 1280)
    A("s_load_dword s63, s[86:87], 0")
    A("s_min_u32 s38, s2, 39"); A("s_lshl_b32 s90, s38, 5")
    A("v_lshrrev_b32 v20, 5, v0"); A("v_mul_u32_u24 v20, 768, v20")
    A("v_lshlrev_b32 v21, 5, v37"); A("v_add_u32 v20, v20, v21")
    A("v_and_b32 v21, 16, v0"); A("v_add_u32 v20, v20, v21")
    A("s_mul_i32 s38, s3, 1536"); A("v_add_u32 v20, s38, v20")
    A("s_lshl_b32 s38, s3, 3"); A("v_mov_b32 v21, s38")
    A("v_lshlrev_b32 v22, 7, v37"); A("v_lshlrev_b32 v23, 4, v36"); A("v_add_u32 v22, v22, v23")
    A(f"s_lshl_b32 s91, s4, 10"); A(f"s_add_u32 s91, s91, {OX}")
    A("v_lshlrev_b32 v23, 10, v36"); A("v_add_u32 v23, v23, v38")
    A("s_lshl_b32 s92, s5, 13"); A("s_lshl_b32 s38, s6, 7"); A("s_add_u32 s92, s92, s38"); A(f"s_add_u32 s92, s92, {OX}")
    A("v_cmp_ne_u32 s[98:99], s6, v36")
    A("v_lshrrev_b32 v24, 5, v0"); A("v_lshlrev_b32 v24, 2, v24")
    A("v_and_b32 v25, 8, v0")
    A("v_cmp_ne_u32 vcc, 0, v25")
    nop(1)
    A("v_cndmask_b32 v24, v24, v25, vcc")
    A("v_add_u32 v24, s3, v24")
    A("v_lshlrev_b32 v25, 4, v24"); A("v_lshlrev_b32 v26, 1, v37"); A("v_add_u32 v25, v25, v26")
    A("v_bfe_u32 v26, v0, 4, 1"); A("v_add_u32 v25, v25, v26")
    A("v_lshrrev_b32 v26, 2, v25"); A("v_lshlrev_b32 v26, 14, v26")
    A("v_and_b32 v27, 3, v25"); A("v_lshlrev_b32 v27, 4, v27"); A("v_add_u32 v26, v26, v27")
    A("v_min_u32 v25, 159, v25"); A("v_lshlrev_b32 v25, 4, v25")
    A("v_and_b32 v27, 40, v0")
    A("v_cmp_eq_u32 vcc, 40, v27")
    A("v_cmp_lt_u32 s[96:97], 9, v24")
    A("s_or_b64 vcc, vcc, s[96:97]")
    A("v_mov_b32 v27, 0x40000000")
    nop(0)
    A("v_cndmask_b32 v26, v26, v27, vcc")
    A(f"s_lshl_b32 s93, s4, 6"); A(f"s_add_u32 s93, s93, {YX}")
    A("v_mul_u32_u24 v24, 24, v36"); A("v_add_u32 v24, v24, v37"); A("v_lshlrev_b32 v24, 2, v24")
    A(f"v_add_u32 v24, {L_PART}, v24")
    A("v_lshlrev_b32 v39, 4, v0")
    A("s_mov_b32 s95, 0xffffff00"); A("s_mov_b32 s100, 0x0c0c0400"); A("s_mov_b32 s101, 0x0c040100"); A("s_mov_b32 s59, 0x04020100")
    A("v_mul_u32_u24 v34, 1280, v36"); A("v_add_u32 v34, v34, v38")
    A("s_lshl_b32 s38, s3, 7"); A("v_add_u32 v34, s38, v34")
    A("s_cmp_ge_u32 s3, 2"); A("s_cselect_b32 s38, 0x40000000, 0"); A("v_add_u32 v35, s38, v34")
    A("s_mul_i32 s56, s4, 30720"); A("s_add_u32 s57, s56, 10240"); A("s_add_u32 s58, s56, 20480")
    A("v_mov_b32 v2, 0xff800000")
    A("v_mov_b32 v3, 0")
    dd = D0
    while st["I"] < N:
        if dd > D and st["I"] >= D0 + d0n: dd -= 1
        if dd < D and st["I"] >= 8:
            dd += 1
        else:
            wait_for(st["I"] - dd + 1)
            if es and landed[0] in (1, 11, 23): stamp({1: 3, 11: 5, 23: 6}[landed[0]], True)
        issue()
    A("s_waitcnt lgkmcnt(0)")
    A("s_add_u32 s63, s63, 0x9E3779B9")
    A("s_and_b32 s94, s63, 0xff"); A("v_mov_b32 v27, s94"); A("s_mul_i32 s94, s94, 0x01010101")
    if fb == 2:
        A("s_memrealtime s[88:89]"); A(f"v_mov_b32 v255, {sched(N)}"); A("s_waitcnt lgkmcnt(0)")
        A("v_mov_b32 v254, s88"); A(f"ds_write_b64 v21, v[254:255] offset:{L_PRG}"); A("s_waitcnt lgkmcnt(0)")
    stamp(1)
    A("s_barrier")
    for it in range(3): A(f"ds_read_b128 v[{8+4*it}:{11+4*it}], v38 offset:{L_QBF + 128*it}")
    if loc: A(f"ds_read_b32 v33, v3 offset:{L_LOC}")
    A("s_waitcnt lgkmcnt(0)")
    if loc: A("v_readfirstlane_b32 s34, v33")
    stamp(2)

    def prep(g):
        A(f"v_fma_f32 v33, v{SC0+g}, s62, -v2")
        A("v_exp_f32 v33, v33")
        nop(0)
        A("v_add_f32 v3, v3, v33")
        A("v_cvt_pk_bf16_f32 v33, v33, v33")
        for r in range(4): A(f"v_and_b32 v{28+r}, v33, v{4+r}")
    ACC = [8, 12, 16]
    def consume(kind, n):
        r = slot_of[(kind, n)]
        g, it = divmod(n, 3)
        if kind == "K":
            for j in range(4):
                c = "0" if (it == 0 and j == 0) else "v32"
                A(f"v_dot2_f32_bf16 v32, v{r+j}, v{8+4*it+j}, {c}")
            if it == 2:
                nop(2)
                dpp("v_add_f32", 33, 32, 32, "quad_perm:[1,0,3,2]"); nop(1)
                dpp("v_add_f32", 33, 33, 33, "quad_perm:[2,3,0,1]"); nop(1)
                dpp("v_add_f32", 33, 33, 33, "row_half_mirror")
                bfr(33, 33)
                A("v_mul_f32 v33, s61, v33")
                A("v_cvt_pk_bf16_f32 v33, v33, v33")
                A(f"v_and_b32 v{SC0+g}, s60, v33")
                A(f"v_max_f32 v2, v2, v{SC0+g}")
        else:
            c = "0" if g == 0 else f"v[{ACC[it]}:{ACC[it]+3}]"
            A(f"v_mfma_f32_16x16x32_bf16 v[{ACC[it]}:{ACC[it]+3}], v[28:31], v[{r}:{r+3}], {c}")
            if it == 2 and g < 63:
                prep(g + 1)
                if g + 1 == 63:
                    redhi([3], [33], "v_add_f32")
                nop(1)
        if r not in early: free.append(r)
    def transition():
        stamp(3)
        redhi([2], [33], "v_max_f32")
        A("v_mul_f32 v2, s62, v2")
        prep(0)
        nop(1)
    work = [("K", n) for n in range(NK)] + [("T", 0)] + [("V", n) for n in range(NV)]
    wi = 0
    total = len(order)
    if fbstart is None: fbstart = N + 2
    while wi < len(work):
        cnt = 0
        while wi < len(work) and cnt < catch:
            k = work[wi]
            if k[0] == "T":
                transition(); wi += 1; cnt = catch; break
            if idx[k] < landed[0]:
                consume(*k); wi += 1; cnt += 1
            else:
                break
        if wi >= len(work): break
        if st["I"] < total and fb:
            I = st["I"]
            wait_for(I - Dhi + 1)
            if I < fbstart:
                A(f"s_waitcnt vmcnt({D-1})")
            elif I < total - endhi:
                A(f"s_cbranch_vccnz L_fb{I}"); A(f"s_waitcnt vmcnt({Dlo-1})"); A(f"L_fb{I}:")
            issue()
            if (I - fbstart + 2) % per == 0:
                A("s_memrealtime s[88:89]")
                if fb == 2: A(f"ds_read_b64 v[252:253], v21 offset:{L_REF}")
            if (I - fbstart + 1) % per == 0 and I > N:
                A("s_waitcnt lgkmcnt(0)")
                S = sched(I)
                if fb == 1:
                    A("s_sub_u32 s88, s88, s28")
                    A(f"s_cmp_gt_i32 s88, {S}")
                    A("s_cselect_b64 vcc, -1, 0")
                else:
                    A(f"v_mov_b32 v255, {S}")
                    A("v_mul_u32_u24 v253, v255, v253")
                    A("v_mov_b32 v254, s88")
                    A("v_lshrrev_b32 v253, 12, v253")
                    A(f"ds_write_b64 v21, v[254:255] offset:{L_PRG}")
                    A("v_add_u32 v253, v253, v252")
                    A("v_sub_u32 v253, v254, v253")
                    A("v_cmp_lt_i32 vcc, 0, v253")
        elif st["I"] < total:
            dcur = D2 if (D2 and st["I"] >= total - NWO - sw) else D
            wait_for(st["I"] - dcur + 1)
            issue()
            if st["I"] < total and st["I"] - landed[0] < dcur: issue()
            if all(o[0] == "W" for o in order[st["I"]:]) and idx[("V", NV - 1)] < landed[0] + 1:
                while st["I"] < total: issue()
        else:
            k = work[wi]
            if k[0] != "T": wait_for(idx[k] + 1)
    while st["I"] < total: issue()
    stamp(4)
    A(f"ds_write_b64 v21, v[2:3] offset:{L_ML}")
    A("s_mov_b64 exec, s[36:37]")
    nop(5)
    for it in range(3): A(f"ds_write_b128 v20, v[{ACC[it]}:{ACC[it]+3}] offset:{L_PART + 256*it}")
    A("s_mov_b64 exec, -1")
    A("s_waitcnt lgkmcnt(0)")
    A("s_barrier")
    stamp(5)
    A(f"ds_read_b128 v[84:87], v25 offset:{L_YF}")
    A(f"ds_read_b128 v[88:91], v25 offset:{L_YF+2560}")
    A("s_cmp_eq_u32 s3, 1")
    A("s_cbranch_scc1 L_poller1")
    A("s_cmp_lg_u32 s3, 0")
    A("s_cbranch_scc1 L_b3")
    A(f"ds_read_b128 v[40:43], v21 offset:{L_ML}")
    A(f"ds_read_b128 v[44:47], v21 offset:{L_ML+16}")
    for w in range(4):
        if w: A(f"v_add_u32 v{92+w}, {1536*w}, v24")
        for e in range(3):
            r = 48 + w * 6 + e * 2
            A(f"ds_read2_b32 v[{r}:{r+1}], v{92+w if w else 24} offset0:{8*e} offset1:{8*e+192}")
    A("s_waitcnt lgkmcnt(12)")
    A("v_max3_f32 v72, v40, v42, v44"); A("v_max_f32 v72, v72, v46")
    A("v_and_b32 v72, s95, v72")
    for w in range(4): A(f"v_sub_f32 v{40+2*w}, v{40+2*w}, v72")
    for w in range(4): A(f"v_exp_f32 v{40+2*w}, v{40+2*w}")
    A("s_mov_b32 vcc_lo, 0xaaaaaaaa"); A("s_mov_b32 vcc_hi, 0xaaaaaaaa")
    A("v_mul_f32 v73, v40, v41")
    for w in range(1, 4): A(f"v_fmac_f32 v73, v{40+2*w}, v{41+2*w}")
    A("v_cndmask_b32 v79, v72, v73, vcc")
    A("s_waitcnt lgkmcnt(0)")
    for w in range(4):
        for e in range(3):
            r = 48 + w * 6 + e * 2
            A(f"v_add_f32 v{r}, v{r}, v{r+1}")
    for e in range(3): A(f"v_mul_f32 v{76+e}, v40, v{48+e*2}")
    for w in range(1, 4):
        for e in range(3): A(f"v_fmac_f32 v{76+e}, v{40+2*w}, v{48+w*6+e*2}")
    for r in range(4): A(f"v_and_or_b32 v{76+r}, v{76+r}, s95, v27")
    A("s_mov_b64 exec, s[98:99]")
    if loc & 1:
        A("s_cmp_eq_u32 s34, 1"); A("s_cbranch_scc1 L_oloc")
        A("buffer_store_dwordx4 v[76:79], v23, s[16:19], s92 offen sc1")
        A("s_branch L_odone")
        A("L_oloc:")
        A("buffer_store_dwordx4 v[76:79], v23, s[16:19], s92 offen")
        A("L_odone:")
    else:
        A("buffer_store_dwordx4 v[76:79], v23, s[16:19], s92 offen" + ("" if xloc & 1 else " sc1"))
    if tl == 2: stamp(1, True)
    A("s_not_b64 exec, exec")
    A(f"ds_write_b128 v22, v[76:79] offset:{L_IN}")
    A("s_mov_b64 exec, -1")
    A("s_branch L_b3")
    A("L_poller1:")
    if dl1: A(f"s_sleep {dl1}")
    A("v_cmp_ne_u32 vcc, s6, v37")
    A("s_mov_b64 exec, vcc")
    A(f"s_mov_b32 s38, {SPIN}")
    for k in range(np1):
        if k: A(f"s_sleep {sl1}")
        A(f"buffer_load_dwordx4 v[{40+4*k}:{43+4*k}], v22, s[16:19], s91 offen sc1")
    if tl == 2: A("s_waitcnt vmcnt(0)"); stamp(2, True)
    A("L_poll1:")
    for k in range(np1):
        r = 40 + 4 * k
        A(f"s_waitcnt vmcnt({np1-1})")
        tagword(60, r)
        A("v_cmp_eq_u32 vcc, s94, v60")
        A("s_andn2_b64 s[96:97], exec, vcc")
        A("s_mov_b64 exec, vcc")
        A(f"ds_write_b128 v39, v[{r}:{r+3}] offset:{L_IN}")
        A("s_mov_b64 exec, s[96:97]")
        A("s_cbranch_execz L_got1")
        if np1 == 1 and sl1: A(f"s_sleep {sl1}")
        A("s_waitcnt lgkmcnt(0)")
        A(f"buffer_load_dwordx4 v[{r}:{r+3}], v22, s[16:19], s91 offen sc1")
    A("s_sub_u32 s38, s38, 1")
    A("s_cbranch_scc0 L_poll1")
    A("L_got1:")
    if tl == 2: stamp(3, True)
    A("s_mov_b64 exec, -1")
    A("L_b3:")
    A("s_waitcnt lgkmcnt(0)")
    A("s_barrier")
    A(f"ds_read_b128 v[92:95], v39 offset:{L_IN}")
    for r in range(4): A(f"v_add_f32 v{84+r}, v{84+r}, v{88+r}")
    stamp(6)
    A("s_waitcnt lgkmcnt(0)")
    A("v_and_b32 v95, s95, v95")
    for e in range(3): A(f"v_and_b32 v{92+e}, s95, v{92+e}")
    A("v_mov_b32 v96, v95"); A("v_mov_b32 v97, v95")
    nop(0)
    A("v_mov_b32_dpp v96, v95 row_ror:8 row_mask:0xf bank_mask:0xc")
    A("v_mov_b32_dpp v97, v95 row_ror:8 row_mask:0xf bank_mask:0x3")
    A("v_mov_b32 v98, v96")
    red8([98], "v_max_f32")
    A("v_sub_f32 v96, v96, v98")
    A("v_exp_f32 v96, v96")
    nop(0)
    A("v_mul_f32 v95, v96, v97")
    for e in range(3): A(f"v_mul_f32 v{92+e}, v96, v{92+e}")
    nop(0)
    red8([95, 92, 93, 94], "v_add_f32")
    A("v_rcp_f32 v95, v95")
    nop(0)
    for e in range(3): A(f"v_mul_f32 v{92+e}, v95, v{92+e}")
    for e in range(3): A(f"v_cvt_pk_bf16_f32 v{92+e}, v{92+e}, v{92+e}")
    for e in range(3):
        for r in range(4): A(f"v_and_b32 v{8+4*e+r}, v{92+e}, v{4+r}")
    if wo_early < max(D, Dhi, D2 or 0) + 12:
        A("s_cmp_eq_u32 s3, 0"); A("s_cbranch_scc1 L_wo0"); A("s_cmp_eq_u32 s3, 1"); A("s_cbranch_scc1 L_wo1")
        A("s_waitcnt vmcnt(0)"); A("L_wo0:"); A("s_waitcnt vmcnt(1)"); A("L_wo1:")
    else: nop(1)
    YA = [60, 64, 68]
    for e in range(3):
        for k in range(3):
            r = slot_of[("W", 3 * e + k)]
            c = "0" if e == 0 else f"v[{YA[k]}:{YA[k]+3}]"
            A(f"v_mfma_f32_16x16x32_bf16 v[{YA[k]}:{YA[k]+3}], v[{8+4*e}:{11+4*e}], v[{r}:{r+3}], {c}")
    nop(7)
    for r in range(4): A(f"v_permlane32_swap_b32 v{60+r}, v{64+r}")
    for r in range(4): A(f"v_mov_b32 v{72+r}, v{68+r}")
    nop(1)
    for r in range(4): A(f"v_permlane32_swap_b32 v{68+r}, v{72+r}")
    for r in range(4): dpp("v_add_f32", 76 + r, 64 + r, 60 + r, "row_ror:8")
    for r in range(4): dpp("v_add_f32", 76 + r, 68 + r, 72 + r, "row_ror:8", bank="0xc")
    for r in range(4): A(f"v_add_f32 v{76+r}, v{76+r}, v{84+r}")
    for r in range(4): A(f"v_and_or_b32 v{76+r}, v{76+r}, s95, v27")
    A("buffer_store_dwordx4 v[76:79], v26, s[16:19], s93 offen sc1")
    if tl == 1: stamp(1, True)
    if tl == 1: A("s_waitcnt vmcnt(0)"); stamp(2, True)
    A("s_cmp_ge_u32 s2, 40")
    A("s_cbranch_scc1 L_fin")
    A("s_lshl_b32 s91, s2, 14"); A("s_lshl_b32 s38, s3, 12"); A("s_add_u32 s91, s91, s38"); A(f"s_add_u32 s91, s91, {YX}")
    srd(8, 64, 1280)
    A("v_lshlrev_b32 v61, 3, v0")
    A("buffer_load_dwordx2 v[100:101], v61, s[8:11], s90 offen")
    for k in range(4): A(f"s_mov_b64 s[{28+2*k}:{29+2*k}], -1")
    if dry:
        A("s_mov_b64 s[56:57], 0")
        A("s_branch L_got2")
        A("L_real2:")
        A("s_mov_b64 s[56:57], 15")
    A(f"s_mov_b32 s38, {SPIN}")
    A("s_waitcnt vmcnt(0)")
    if dl2: A(f"s_sleep {dl2}")
    A("L_poll2:")
    for k in range(4):
        A(f"s_mov_b64 exec, s[{28+2*k}:{29+2*k}]")
        A(f"buffer_load_dwordx4 v[{40+4*k}:{43+4*k}], v39, s[16:19], s91 offen offset:{1024*k} sc1")
    A("s_mov_b64 exec, -1")
    for k in range(4):
        A(f"s_waitcnt vmcnt({3-k})")
        tagword(56 + k, 40 + 4 * k)
        A(f"v_cmp_ne_u32 s[{28+2*k}:{29+2*k}], s94, v{56+k}")
    A("s_or_b64 s[96:97], s[28:29], s[30:31]"); A("s_or_b64 vcc, s[32:33], s[34:35]"); A("s_or_b64 vcc, vcc, s[96:97]")
    A("s_cbranch_scc0 L_got2")
    if sl2:
        A("s_bcnt1_i32_b64 s39, vcc"); A(f"s_cmp_lt_u32 s39, {thr2}"); A("s_cbranch_scc1 L_nosl2"); A(f"s_sleep {sl2}"); A("L_nosl2:")
    A("s_sub_u32 s38, s38, 1")
    A("s_cbranch_scc0 L_poll2")
    A("L_got2:")
    if tl == 1: stamp(3, True)
    for r in range(40, 56): A(f"v_and_b32 v{r}, s95, v{r}")
    for r in range(4):
        A(f"v_add_f32 v{40+r}, v{40+r}, v{44+r}"); A(f"v_add_f32 v{48+r}, v{48+r}, v{52+r}")
    for r in range(4): A(f"v_add_f32 v{40+r}, v{40+r}, v{48+r}")
    for r in range(4): dpp("v_add_f32", 40 + r, 40 + r, 40 + r, "row_ror:4")
    redhi([40, 41, 42, 43], [44, 45, 46, 47], "v_add_f32")
    A("s_lshl_b32 s38, s3, 6"); A("v_add_u32 v44, s38, v39")
    A("s_mov_b64 exec, 15")
    A(f"ds_write_b128 v44, v[40:43] offset:{L_RED}")
    A("s_waitcnt lgkmcnt(0)")
    A("s_barrier")
    A("s_cmp_lg_u32 s3, 0")
    A("s_cbranch_scc1 L_noep")
    for k in range(1, 4): A(f"ds_read_b128 v[{40+4*k}:{43+4*k}], v39 offset:{L_RED + 64*k}")
    A("v_lshlrev_b32 v56, 16, v100"); A("v_and_b32 v57, s60, v100"); A("v_lshlrev_b32 v58, 16, v101"); A("v_and_b32 v59, s60, v101")
    A("v_mov_b32 v62, s63")
    A("s_waitcnt lgkmcnt(0)")
    for r in range(4):
        A(f"v_add_f32 v{40+r}, v{40+r}, v{44+r}"); A(f"v_add_f32 v{48+r}, v{48+r}, v{52+r}")
    for r in range(4): A(f"v_add_f32 v{40+r}, v{40+r}, v{48+r}")
    for r in range(4): A(f"v_add_f32 v{40+r}, v{56+r}, v{40+r}")
    A("v_cvt_pk_bf16_f32 v40, v40, v41"); A("v_cvt_pk_bf16_f32 v41, v42, v43")
    if dry: A("s_mov_b64 exec, s[56:57]")
    A("buffer_store_dwordx2 v[40:41], v61, s[24:27], s90 offen" + (" sc1" if osc else ""))
    A("s_cmp_lg_u32 s2, 0")
    A("s_cbranch_scc1 L_noep")
    A("s_and_b64 exec, exec, 1")
    A("buffer_store_dword v62, v21, s[16:19], 0 offen" + (" sc1" if osc else ""))
    if dbgtime:
        A("s_memrealtime s[42:43]"); srd(28, 84, 256); A("s_waitcnt lgkmcnt(0)")
        A("s_sub_u32 s42, s42, s40"); A("v_mov_b32 v45, s42"); A("buffer_store_dword v45, v21, s[28:31], 0 offen")
    A("L_noep:")
    A("s_mov_b64 exec, -1")
    if dry:
        A("s_cmp_eq_u32 s56, 0"); A("s_cbranch_scc1 L_real2")
    if diag: A("s_branch L_fin")
    else: A("s_endpgm")

    A("L_helper:")
    inS[0] = False
    A(f"s_setprio {hprio}")
    if x_nohelper:
        A("s_waitcnt lgkmcnt(0)"); srd(16, 86, WS_BYTES); A("s_barrier"); A("s_branch L_noffn")
    A("v_lshlrev_b32 v1, 2, v0")
    A("v_mul_u32_u24 v2, 12288, v36"); A("v_add_u32 v2, v2, v38")
    A(f"s_mul_i32 s7, s6, {80*12288}"); A("s_mul_i32 s38, s5, 384"); A("s_add_u32 s7, s7, s38")
    A("s_waitcnt lgkmcnt(0)")
    if fb: A("s_mov_b32 s98, s28")
    if pre & 16: A("s_load_dword s63, s[86:87], 0")
    srd(8, 64, 1280)
    srd(20, 70, 640 * 6144 * 2)
    for k in range(5): A(f"buffer_load_dword v{40+k}, v1, s[8:11], 0 offen offset:{256*k}")
    WQ = 100
    if warm:
        srd(16, 86, WS_BYTES)
        srd(24, 76, 640 * 1536 * 2); srd(28, 78, 640 * 1536 * 2); srd(32, 80, 1536 * 640 * 2)
        srd(12, 72, 6144 * 640 * 2)
        A("v_mov_b32 v90, 0")
        A("s_mov_b64 exec, 1")
        A(f"s_lshl_b32 s38, s4, 10"); A(f"s_add_u32 s38, s38, {QX}")
        A("buffer_load_dword v91, v90, s[16:19], s38 offen sc1")
        if warm > 1:
            A(f"s_mul_i32 s38, s6, {80*3072}")
            A("buffer_load_dword v92, v90, s[24:27], s38 offen nt")
            A("buffer_load_dword v93, v90, s[28:31], s38 offen nt")
            A(f"s_mul_i32 s38, s4, {6*1280}")
            A("buffer_load_dword v94, v90, s[32:35], s38 offen nt")
            A(f"s_mul_i32 s38, s4, {24*1280}")
            A("buffer_load_dword v95, v90, s[12:15], s38 offen nt")
        if warm > 2:
            srd(12, 68, 201326592)
            A(f"s_mul_i32 s38, s5, {16384*384}")
            for pg in range(4):
                A(f"buffer_load_dword v96, v90, s[12:15], s38 offen nt")
                A(f"s_add_u32 s38, s38, {(2<<20) - 64}")
            srd(12, 66, 201326592)
            A(f"s_mul_i32 s38, s5, {16384*384}")
            for pg in range(3):
                A(f"s_add_u32 s38, s38, {(2<<20) - 64}")
                A(f"buffer_load_dword v96, v90, s[12:15], s38 offen nt")
        A("s_mov_b64 exec, -1")
    if x_nowq: A("v_mov_b32 v2, 0x40000000")
    for gq in range(10):
        if gq: A(f"s_add_u32 s7, s7, {8*12288}")
        for it in range(3):
            r = WQ + 12 * gq + 4 * it
            if 3 * gq + it >= wqd: A(f"s_waitcnt vmcnt({wqd - 1})")
            A(f"buffer_load_dwordx4 v[{r}:{r+3}], v2, s[20:23], s7 offen offset:{128*it} {pol}")
    if not (pre & 16): A("s_load_dword s63, s[86:87], 0")
    srd(16, 86, WS_BYTES)
    srd(24, 76, 640 * 1536 * 2); srd(28, 78, 640 * 1536 * 2); srd(32, 80, 1536 * 640 * 2)
    npw = 0
    def touch_addr():
        A("v_lshlrev_b32 v75, 14, v0"); A("s_lshl_b32 s38, s4, 6"); A(f"s_add_u32 s38, s38, {YX}"); A("v_add_u32 v75, s38, v75")
        A("v_lshlrev_b32 v94, 10, v37"); A("s_lshl_b32 s38, s5, 13"); A(f"s_add_u32 s38, s38, {OX}"); A("v_add_u32 v94, s38, v94")
        A("v_cmp_lt_u32 vcc, 39, v0"); nop(1); A("v_cndmask_b32 v75, v75, v94, vcc")
        A("v_and_b32 v94, 15, v0"); A("v_lshlrev_b32 v94, 10, v94"); A("s_min_u32 s38, s2, 39"); A("s_lshl_b32 s38, s38, 14"); A(f"s_add_u32 s38, s38, {YX}"); A("v_add_u32 v94, s38, v94")
        A("v_cmp_lt_u32 vcc, 47, v0"); nop(1); A("v_cndmask_b32 v75, v75, v94, vcc")
    if pre & (32 | 64 | 128): touch_addr()
    if pre & 32:
        A("buffer_load_dword v99, v75, s[16:19], 0 offen sc1"); npw = 1
    if pre & 16:
        A("v_lshlrev_b32 v22, 4, v0")
        A("v_lshlrev_b32 v23, 10, v36"); A("v_add_u32 v23, v23, v38")
        A(f"s_lshl_b32 s38, s4, 10"); A(f"s_add_u32 s38, s38, {QX}")
        A("s_lshl_b32 s56, s5, 13"); A("s_lshl_b32 s39, s6, 7"); A("s_add_u32 s56, s56, s39"); A(f"s_add_u32 s56, s56, {FX}")
        A("s_waitcnt lgkmcnt(0)")
        for r in range(96, 100): A(f"v_mov_b32 v{r}, s63")
        A("v_mov_b32 v96, 0"); A("v_mov_b32 v97, 1")
        A("buffer_store_dwordx4 v[96:99], v22, s[16:19], s38 offen")
        A(f"s_mul_i32 s56, s4, 384"); A(f"s_add_u32 s56, s56, {FX}")
        A("s_bfm_b64 exec, 24, 0")
        A("buffer_store_dwordx4 v[96:99], v22, s[16:19], s56 offen")
        A("s_mov_b64 exec, -1")
        npw = 2
    A(f"s_waitcnt vmcnt({30 + npw})")
    for k in range(5):
        A(f"v_lshlrev_b32 v{50+2*k}, 16, v{40+k}"); A(f"v_and_b32 v{51+2*k}, s60, v{40+k}")
    A("v_add_f32 v45, v50, v51")
    for k in range(2, 10): A(f"v_add_f32 v45, v45, v{50+k}")
    red8([45], "v_add_f32"); redhi([45], [46], "v_add_f32")
    A(f"v_mul_f32 v45, {f2u(1/640):#x}, v45")
    A("v_sub_f32 v47, v50, v45"); A("v_mul_f32 v46, v47, v47")
    for k in range(1, 10):
        A(f"v_sub_f32 v47, v{50+k}, v45"); A("v_fmac_f32 v46, v47, v47")
    red8([46], "v_add_f32"); redhi([46], [47], "v_add_f32")
    A(f"v_mul_f32 v46, {f2u(1/640):#x}, v46")
    bfr(45, 45); bfr(46, 46)
    A(f"v_add_f32 v46, {f2u(1e-5):#x}, v46"); bfr(46, 46)
    A("v_sqrt_f32 v46, v46"); nop(0); bfr(46, 46)
    A("v_rcp_f32 v47, v46")
    for k in range(10):
        A(f"v_sub_f32 v{50+k}, v{50+k}, v45"); bfr(50 + k, 50 + k)
    for k in range(10):
        A(f"v_mul_f32 v48, v{50+k}, v47")
        A(f"v_fma_f32 v49, -v48, v46, v{50+k}")
        A(f"v_fma_f32 v{50+k}, v49, v47, v48")
    for k in range(5):
        A(f"v_cvt_pk_bf16_f32 v{40+k}, v{50+2*k}, v{51+2*k}")
        A(f"ds_write_b32 v1, v{40+k} offset:{L_XN + 256*k}")
    A("s_mul_i32 s38, s6, 160"); A("v_lshlrev_b32 v3, 1, v36"); A("v_add_u32 v3, s38, v3")
    for gq in range(10): A(f"ds_read_u16 v{60+gq}, v3 offset:{L_XN + 16*gq}")
    A("v_lshrrev_b32 v20, 5, v0"); A("v_mul_u32_u24 v20, 768, v20")
    A("v_lshlrev_b32 v21, 5, v37"); A("v_add_u32 v20, v20, v21")
    A("v_and_b32 v21, 16, v0"); A("v_add_u32 v20, v20, v21")
    A("v_mul_u32_u24 v21, 12, v0"); A(f"v_add_u32 v21, {L_TMP}, v21")
    A("v_lshlrev_b32 v22, 4, v0")
    A("s_waitcnt lgkmcnt(0)")
    A("s_add_u32 s63, s63, 0x9E3779B9")
    A("s_xor_b32 s63, s63, 1")
    for gq in range(10): A(f"v_lshl_or_b32 v{60+gq}, v{60+gq}, 16, v{60+gq}")
    for gq in range(10):
        sel = 28 if gq % 2 == 0 else 32
        for r in range(4): A(f"v_and_b32 v{sel+r}, v{60+gq}, v{4+r}")
        A(f"s_waitcnt vmcnt({27 - 3*gq + (npw if gq < 9 else 0)})")
        nop(0)
        for it in range(3):
            r = WQ + 12 * gq + 4 * it
            c = "0" if gq == 0 else f"v[{8+4*it}:{11+4*it}]"
            A(f"v_mfma_f32_16x16x32_bf16 v[{8+4*it}:{11+4*it}], v[{sel}:{sel+3}], v[{r}:{r+3}], {c}")
    stamp(1)
    A(f"s_lshl_b32 s38, s4, 10"); A(f"s_add_u32 s38, s38, {QX}")
    A(f"s_lshl_b32 s91, s5, 13"); A(f"s_add_u32 s91, s91, {QX}"); A("s_add_u32 s92, s91, 4096")
    A("s_getreg_b32 s93, hwreg(HW_REG_XCC_ID, 0, 4)"); A("s_lshl_b32 s93, s93, 8"); A("s_xor_b32 s93, s93, s63")
    A("s_mov_b32 s90, 0xfffff0ff")
    A("v_mov_b32 v43, s93")
    nop(1)
    A("s_mov_b64 exec, s[36:37]")
    for it in range(3): A(f"ds_write_b128 v20, v[{8+4*it}:{11+4*it}] offset:{L_TMP + 256*it}")
    A("s_mov_b64 exec, -1")
    for e in range(3): A(f"ds_read2_b32 v[{44+2*e}:{45+2*e}], v21 offset0:{e} offset1:{e+192}")
    A("s_waitcnt lgkmcnt(0)")
    for e in range(3): A(f"v_add_f32 v{40+e}, v{44+2*e}, v{45+2*e}")
    if xq != 2: A("buffer_store_dwordx4 v[40:43], v22, s[16:19], s38 offen" + ("" if xloc & 4 else " sc1"))
    stamp(2)
    if xq in (3, 4):
        A("s_waitcnt vmcnt(0)")
        stamp(6)
        if dlq: A(f"s_sleep {dlq}")
        if xq == 3:
            for z in range(3): A("s_sleep 25")
            stamp(2)
    A(f"s_mov_b32 s38, {SPIN}")
    QM = [40 + 2 * p for p in range(8)] if not diag else [64 + 2 * p for p in range(8)]
    QM = [8, 10, 12, 14, 56, 58, 94, 96]
    for p in range(8): A(f"s_mov_b64 s[{QM[p]}:{QM[p]+1}], -1")
    A("L_pollq:")
    for p in range(8):
        A(f"s_mov_b64 exec, s[{QM[p]}:{QM[p]+1}]")
        A(f"buffer_load_dwordx4 v[{100+4*p}:{103+4*p}], v22, s[16:19], s{91 + p//4} offen offset:{1024*(p%4)} sc1")
    A("s_mov_b64 exec, -1")
    for p in range(8):
        A(f"s_waitcnt vmcnt({7-p})")
        A(f"v_xor_b32 v{48+p}, s93, v{103+4*p}"); A(f"v_and_b32 v45, s90, v{48+p}")
        A(f"v_cmp_ne_u32 s[{QM[p]}:{QM[p]+1}], 0, v45")
    A(f"s_or_b64 vcc, s[{QM[0]}:{QM[0]+1}], s[{QM[1]}:{QM[1]+1}]")
    for p in range(2, 8): A(f"s_or_b64 vcc, vcc, s[{QM[p]}:{QM[p]+1}]")
    if not x_nopollq:
      A("s_cbranch_scc0 L_gotq")
      if slq: A(f"s_sleep {slq}")
      A("s_sub_u32 s38, s38, 1")
      A("s_cbranch_scc0 L_pollq")
    A("L_gotq:")
    stamp(3)
    for p in range(1, 8):
        for e in range(3): A(f"v_add_f32 v{100+e}, v{100+e}, v{100+4*p+e}")
    A("v_cvt_pk_bf16_f32 v44, v100, v101"); A("v_cvt_pk_bf16_f32 v45, v102, v102")
    A("v_mul_u32_u24 v23, 6, v0")
    A(f"ds_write_b16 v23, v44 offset:{L_QBF}")
    A(f"ds_write_b16_d16_hi v23, v44 offset:{L_QBF+2}")
    A(f"ds_write_b16 v23, v45 offset:{L_QBF+4}")
    A("v_or3_b32 v48, v48, v49, v50"); A("v_or3_b32 v51, v51, v52, v53"); A("v_or3_b32 v48, v48, v54, v55"); A("v_or_b32 v48, v48, v51")
    A("v_cmp_ne_u32 vcc, 0, v48"); A("s_cmp_eq_u64 vcc, 0"); A("s_cselect_b32 s90, 1, 0")
    A("v_mov_b32 v49, s90"); A("v_mov_b32 v50, 0"); A(f"ds_write_b32 v50, v49 offset:{L_LOC}")
    if fb == 2:
        A("v_lshlrev_b32 v70, 3, v0"); A("v_mov_b32 v72, s98"); A("v_mov_b32 v73, 0x1000"); A("v_mov_b32 v71, 0")
        A("s_mov_b64 exec, 15"); A(f"ds_write_b64 v70, v[72:73] offset:{L_REF}"); A("s_mov_b64 exec, -1")
        A("v_lshlrev_b32 v74, 4, v0"); A("s_lshl_b32 s99, s2, 4"); A(f"s_add_u32 s99, s99, {PX}"); A(f"s_mov_b32 s56, {PX}")
    A("s_waitcnt lgkmcnt(0)")
    A("s_barrier")
    A("s_setprio 0")
    stamp(4)
    nctl = [0]
    def ctl_publish():
        k = nctl[0]; nctl[0] += 1
        A(f"ds_read_b128 v[76:79], v71 offset:{L_PRG}"); A(f"ds_read_b128 v[80:83], v71 offset:{L_PRG+16}")
        A("s_lshl_b32 s57, s98, 2")
        A("s_waitcnt lgkmcnt(0)")
        A("v_readfirstlane_b32 s58, v77")
        A("v_add3_u32 v85, v76, v78, v80"); A("v_add_u32 v85, v85, v82"); A("v_subrev_u32 v85, s57, v85")
        A("v_add3_u32 v86, v77, v79, v81"); A("v_add_u32 v86, v86, v83")
        A("v_mov_b32 v84, s98"); A("v_cvt_f32_u32 v85, v85"); A("v_cvt_f32_u32 v86, v86"); A("v_mov_b32 v87, s63")
        A(f"s_cmp_ge_u32 s2, {nsamp}"); A(f"s_cbranch_scc1 L_nopub{k}")
        A("s_mov_b64 exec, 1")
        A("buffer_store_dwordx4 v[84:87], v71, s[16:19], s99 offen sc1")
        A("s_mov_b64 exec, -1")
        A(f"L_nopub{k}:")
        A("s_add_u32 s99, s99, 1024")
    def ctl_gather():
        k = nctl[0]; nctl[0] += 1
        A("v_mov_b32 v91, 0")
        if nsamp < 64: A(f"s_bfm_b64 exec, {nsamp}, 0")
        A(f"buffer_load_dwordx4 v[88:91], v74, s[16:19], s56 offen {gpol}")
        A("s_mov_b64 exec, -1")
        A("s_add_u32 s56, s56, 1024")
        A("s_waitcnt vmcnt(0)")
        if nsamp < 64: A(f"s_bfm_b64 exec, {nsamp}, 0")
        A("v_cmp_eq_u32 vcc, s63, v91")
        A("s_mov_b64 exec, -1")
        A("v_subrev_u32 v88, s98, v88"); A("v_cvt_f32_i32 v88, v88")
        A(f"s_cbranch_vccz L_noupd{k}")
        for r in range(88, 91): A(f"v_cndmask_b32 v{r}, 0, v{r}, vcc")
        A("v_cndmask_b32 v91, 0, 1.0, vcc")
        nop(0)
        red8([88, 89, 90, 91], "v_add_f32"); redhi([88, 89, 90, 91], [92, 93, 94, 95], "v_add_f32")
        A("v_rcp_f32 v90, v90"); A("v_rcp_f32 v91, v91")
        A(f"v_mul_f32 v89, {f2u(4096.0):#x}, v89")
        A("v_mul_f32 v89, v89, v90"); A("v_mul_f32 v88, v88, v91")
        A(f"v_add_f32 v88, {f2u(bias * 100):#x}, v88")
        A("v_cvt_i32_f32 v88, v88"); A("v_cvt_u32_f32 v89, v89")
        A("v_add_u32 v88, s98, v88")
        A("s_mov_b64 exec, 15"); A(f"ds_write_b64 v70, v[88:89] offset:{L_REF}"); A("s_mov_b64 exec, -1")
        A(f"L_noupd{k}:")
    def prewrite():
        A("s_not_b32 s39, s63")
        for r in range(96, 100): A(f"v_mov_b32 v{r}, s39")
        if pre & 4:
            A("s_lshl_b32 s38, s5, 13"); A("s_lshl_b32 s39, s6, 7"); A("s_add_u32 s38, s38, s39"); A(f"s_add_u32 s38, s38, {OX}")
            A("buffer_store_dwordx4 v[96:99], v23, s[16:19], s38 offen sc1")
        if pre & 8:
            A("v_lshrrev_b32 v94, 2, v0"); A("v_lshlrev_b32 v94, 14, v94"); A("v_and_b32 v95, 48, v74"); A("v_add_u32 v94, v94, v95")
            A(f"s_lshl_b32 s38, s4, 6"); A(f"s_add_u32 s38, s38, {YX}")
            for k in range(3):
                if k == 2: A("s_mov_b32 exec_hi, 0")
                A("buffer_store_dwordx4 v[96:99], v94, s[16:19], s38 offen sc1")
                A(f"s_add_u32 s38, s38, {16*16384}")
            A("s_mov_b64 exec, -1")
    if fb == 2: ctl_publish()
    if x_noffn: A("s_branch L_noffn")
    A("v_mul_u32_u24 v2, 3072, v36"); A("v_add_u32 v2, v2, v38")
    A("v_mov_b32 v24, 0x40000000")
    A("v_cmp_lt_u32 vcc, 5, v37"); nop(1)
    A("v_cndmask_b32 v2, v2, v24, vcc")
    A(f"s_mul_i32 s7, s6, {80*3072}"); A("s_mul_i32 s38, s5, 96"); A("s_add_u32 s7, s7, s38")
    def fissue(gq):
        if gq: A(f"s_add_u32 s7, s7, {8*3072}")
        A(f"buffer_load_dwordx4 v[{100+8*gq}:{103+8*gq}], v2, s[24:27], s7 offen {pol}")
        A(f"buffer_load_dwordx4 v[{104+8*gq}:{107+8*gq}], v2, s[28:31], s7 offen {pol}")
    for gq in range(FD): fissue(gq)
    for gq in range(10):
        sel = 28 if gq % 2 == 0 else 32
        for r in range(4): A(f"v_and_b32 v{sel+r}, v{60+gq}, v{4+r}")
        nis = min(gq + FD, 10)
        A(f"s_waitcnt vmcnt({2*(nis - gq - 1)})")
        if gq + FD < 10: fissue(gq + FD)
        else: nop(0)
        for m in range(2):
            r = 100 + 8 * gq + 4 * m
            c = "0" if gq == 0 else f"v[{8+4*m}:{11+4*m}]"
            A(f"v_mfma_f32_16x16x32_bf16 v[{8+4*m}:{11+4*m}], v[{sel}:{sel+3}], v[{r}:{r+3}], {c}")
    A("v_mul_u32_u24 v2, 1280, v36"); A("v_add_u32 v2, v2, v38")
    A("v_cmp_lt_u32 vcc, 5, v36"); nop(1)
    A("v_cndmask_b32 v2, v2, v24, vcc")
    A(f"s_mul_i32 s7, s4, {6*1280}")
    for lc in range(10):
        A(f"buffer_load_dwordx4 v[{200+4*lc}:{203+4*lc}], v2, s[32:35], s7 offen offset:{128*lc} {pol}")
    A("s_mov_b64 exec, s[36:37]")
    for m in range(2): A(f"ds_write_b128 v20, v[{8+4*m}:{11+4*m}] offset:{L_TMP + 256*m}")
    A("s_mov_b64 exec, -1")
    A("v_mul_u32_u24 v21, 6, v36"); A("v_add_u32 v21, v21, v37"); A("v_lshlrev_b32 v21, 2, v21"); A(f"v_add_u32 v21, {L_TMP}, v21")
    A("v_add_u32 v23, 256, v21")
    A("ds_read2_b32 v[44:45], v21 offset0:0 offset1:192")
    A("ds_read2_b32 v[46:47], v23 offset0:0 offset1:192")
    if not fcompact:
        A("v_lshlrev_b32 v23, 10, v36"); A("v_add_u32 v23, v23, v38")
        A("s_lshl_b32 s38, s5, 13"); A("s_lshl_b32 s39, s6, 7"); A("s_add_u32 s38, s38, s39"); A(f"s_add_u32 s38, s38, {FX}")
        A("v_cmp_gt_u32 vcc, 6, v37")
        A("s_waitcnt lgkmcnt(0)")
        A("v_add_f32 v40, v44, v45"); A("v_add_f32 v41, v46, v47")
        A("v_cndmask_b32 v40, 0, v40, vcc"); A("v_cndmask_b32 v41, 0, v41, vcc")
        A("v_mov_b32 v42, 0")
        A("buffer_store_dwordx4 v[40:43], v23, s[16:19], s38 offen sc1")
        A("v_lshlrev_b32 v22, 7, v37"); A("v_lshlrev_b32 v25, 4, v36"); A("v_add_u32 v22, v22, v25")
        A(f"s_lshl_b32 s91, s4, 10"); A(f"s_add_u32 s91, s91, {FX}")
        A(f"s_mov_b32 s38, {SPIN}")
        A("s_waitcnt vmcnt(0)")
        if fb == 2: ctl_gather()
        else: A("s_sleep 40")
        A("L_pollf:")
        A("buffer_load_dwordx4 v[44:47], v22, s[16:19], s91 offen sc1")
        A("s_waitcnt vmcnt(0)")
        A("v_cmp_ne_u32 vcc, s63, v47")
        A("s_mov_b64 exec, vcc")
        A("s_cbranch_execz L_gotf")
        A("s_sleep 32")
        A("s_sub_u32 s38, s38, 1")
        A("s_cbranch_scc0 L_pollf")
        A("L_gotf:")
        A("s_mov_b64 exec, -1")
    else:
        A("v_mul_u32_u24 v25, 48, v36"); A("v_lshlrev_b32 v26, 3, v37"); A("v_add_u32 v25, v25, v26")
        A(f"s_mul_i32 s38, s4, 384"); A(f"s_add_u32 s38, s38, {FX}")
        A("s_and_b32 s94, s63, 0xff"); A("v_mov_b32 v27, s94"); A("s_mul_i32 s94, s94, 0x01010101")
        A("s_mov_b32 s95, 0xffffff00"); A("s_mov_b32 s100, 0x0c0c0400"); A("s_mov_b32 s101, 0x0c040100"); A("s_mov_b32 s59, 0x04020100")
        A("s_waitcnt lgkmcnt(0)")
        A("v_add_f32 v40, v44, v45"); A("v_add_f32 v41, v46, v47")
        A("v_and_or_b32 v40, v40, s95, v27"); A("v_and_or_b32 v41, v41, s95, v27")
        A("v_mul_u32_u24 v22, 384, v37"); A("v_lshrrev_b32 v26, 1, v36"); A("v_lshlrev_b32 v26, 4, v26"); A("v_add_u32 v22, v22, v26")
        A("v_mov_b32_dpp v42, v40 quad_perm:[1,0,3,2] row_mask:0xf bank_mask:0xf")
        A("v_mov_b32_dpp v43, v41 quad_perm:[1,0,3,2] row_mask:0xf bank_mask:0xf")
        A("s_mov_b32 exec_lo, 0x15151515"); A("s_mov_b32 exec_hi, 0x15151515")
        if loc & 2:
            A("s_cmp_eq_u32 s90, 1"); A("s_cbranch_scc1 L_floc")
            A("buffer_store_dwordx4 v[40:43], v25, s[16:19], s38 offen sc1")
            A("s_branch L_fdone")
            A("L_floc:")
            A("buffer_store_dwordx4 v[40:43], v25, s[16:19], s38 offen")
            A("L_fdone:")
        else:
            A("buffer_store_dwordx4 v[40:43], v25, s[16:19], s38 offen" + ("" if xloc & 2 else " sc1"))
        A("s_mov_b64 exec, -1")
        A("v_lshlrev_b32 v23, 10, v36"); A("v_add_u32 v23, v23, v38")
        A("s_mul_i32 s91, s5, 3072"); A("s_mul_i32 s38, s6, 48"); A("s_add_u32 s91, s91, s38"); A(f"s_add_u32 s91, s91, {FX}")
        for r in range(44, 48): A(f"v_mov_b32 v{r}, 0")
        A("s_waitcnt vmcnt(0)")
        if fb == 2: ctl_gather()
        else: A("s_sleep 40")
        A(f"s_mov_b32 s38, {SPIN}")
        A("s_mov_b32 exec_hi, 0xffff")
        A("L_pollf:")
        A("buffer_load_dwordx4 v[44:47], v22, s[16:19], s91 offen sc1")
        A("s_waitcnt vmcnt(0)")
        tagword(48, 44)
        A("v_cmp_ne_u32 vcc, s94, v48")
        A("s_mov_b64 exec, vcc")
        A("s_cbranch_execz L_gotf")
        A("s_sleep 32")
        A("s_sub_u32 s38, s38, 1")
        A("s_cbranch_scc0 L_pollf")
        A("L_gotf:")
        A("s_mov_b64 exec, -1")
        A("s_mov_b32 vcc_lo, 0xff00ff00"); A("s_mov_b32 vcc_hi, 0xff00ff00")
        A("v_cndmask_b32 v44, v44, v46, vcc"); A("v_cndmask_b32 v45, v45, v47, vcc")
        A("v_and_b32 v44, s95, v44"); A("v_and_b32 v45, s95, v45")
        nop(0)
    red8([44, 45], "v_add_f32")
    bfr(44, 44); bfr(45, 45)
    A("v_max_f32 v44, 0, v44")
    A("v_mul_f32 v44, v44, v45")
    A("v_cvt_pk_bf16_f32 v44, v44, v44")
    for r in range(4): A(f"v_and_b32 v{28+r}, v44, v{4+r}")
    nop(1)
    for lc in range(10):
        A(f"v_mfma_f32_16x16x32_bf16 v[{100+4*lc}:{103+4*lc}], v[28:31], v[{200+4*lc}:{203+4*lc}], 0")
    A("v_lshrrev_b32 v20, 5, v0"); A("v_mul_u32_u24 v20, 2560, v20")
    A("v_lshlrev_b32 v21, 5, v37"); A("v_add_u32 v20, v20, v21")
    A("v_and_b32 v21, 16, v0"); A("v_add_u32 v20, v20, v21")
    nop(3)
    A("s_mov_b64 exec, s[36:37]")
    for lc in range(10): A(f"ds_write_b128 v20, v[{100+4*lc}:{103+4*lc}] offset:{L_YF + 256*lc}")
    A("s_mov_b64 exec, -1")
    A("s_waitcnt lgkmcnt(0)")
    A("L_noffn:")
    stamp(5)
    if fb == 2:
        step = sched(rounds[3]) - sched(rounds[2])
        A(f"s_mov_b32 s59, {sched(rounds[1])}")
        A("s_mov_b32 s57, 0")
        A("L_ctl:")
        A(f"s_mov_b32 s38, {SPIN}")
        A("L_ctlw:")
        A(f"s_sleep {slc}")
        A(f"ds_read_b32 v77, v71 offset:{L_PRG+4}")
        A("s_waitcnt lgkmcnt(0)")
        A("v_cmp_le_u32 vcc, s59, v77")
        A("s_cbranch_vccnz L_ctlgo")
        A("s_sub_u32 s38, s38, 1")
        A("s_cbranch_scc0 L_ctlw")
        A("L_ctlgo:")
        A(f"s_cmp_eq_u32 s59, {sched(rounds[1])}")
        A("s_cbranch_scc1 L_ctlpub")
        ctl_gather()
        A("L_ctlpub:")
        if stg:
            A("s_lshr_b32 s38, s2, 3"); A(f"s_and_b32 s38, s38, {stg-1}"); A(f"s_mul_i32 s38, s38, {step}"); A(f"s_add_u32 s38, s38, {sched(rounds[1]) + stg0 * step}")
            A("s_cmp_lg_u32 s38, s59"); A("s_cbranch_scc1 L_nopw")
            if stgsl:
                A("s_lshr_b32 s38, s2, 3"); A(f"s_lshr_b32 s38, s38, {stg.bit_length()-1}")
                A("L_stgsl:"); A(f"s_sleep {stgsl}"); A("s_sub_u32 s38, s38, 1"); A("s_cbranch_scc0 L_stgsl")
            prewrite()
            A("L_nopw:")
        if pre & 64: A("buffer_load_dword v99, v75, s[16:19], 0 offen sc1")
        if pre & 128:
            A("s_lshr_b32 s38, s2, 3"); A("s_and_b32 s38, s38, 7"); A(f"s_mul_i32 s38, s38, {step}"); A(f"s_add_u32 s38, s38, {sched(rounds[1])}")
            A("s_cmp_lg_u32 s38, s59"); A("s_cbranch_scc1 L_notouch")
            A("buffer_load_dword v99, v75, s[16:19], 0 offen sc1")
            A("L_notouch:")
        A(f"s_add_u32 s59, s59, {step}")
        A(f"s_cmp_gt_u32 s59, {sched(rounds[-1]) + step // 2}")
        A("s_cbranch_scc1 L_ctlend")
        ctl_publish()
        A("s_branch L_ctl")
        A("L_ctlend:")
        if pre & 1:
            A(f"s_lshl_b32 s38, s4, 10"); A(f"s_add_u32 s38, s38, {OX}")
            A("buffer_load_dwordx4 v[96:99], v74, s[16:19], s38 offen sc1")
        if (pre & 12) and not stg: prewrite()
        if pre & 12: A("s_waitcnt vmcnt(0)")
        if pre & 2:
            A("s_cmp_ge_u32 s2, 40"); A("s_cbranch_scc1 L_nopre")
            A("v_lshlrev_b32 v95, 6, v0")
            A("s_lshl_b32 s38, s2, 14"); A(f"s_add_u32 s38, s38, {YX}")
            for k in range(4):
                A(f"buffer_load_dword v{100+k}, v95, s[16:19], s38 offen sc1"); A("s_add_u32 s38, s38, 4096")
            A("L_nopre:")
        if diag: A("v_readfirstlane_b32 s52, v89"); A("s_mov_b32 s53, 0")
    A("s_barrier")

    A("L_fin:")
    if diag:
        stamp(7)
        A("s_waitcnt lgkmcnt(0)")
        A("s_mul_i32 s38, s2, 5"); A("s_add_u32 s38, s38, s3"); A("s_lshl_b32 s38, s38, 6"); A(f"s_add_u32 s38, s38, {700<<20}")
        A("v_mov_b32 v6, 0")
        for j in range(8):
            A(f"v_mov_b32 v2, s{40+2*j}"); A(f"v_mov_b32 v3, s{41+2*j}")
            A(f"buffer_store_dwordx2 v[2:3], v6, s[16:19], s38 offen offset:{8*j}")
            nop(1)
    A("L_end:")
    A("s_endpgm")
    A('.section .rodata,"a"'); A(".p2align 6")
    A(f".amdhsa_kernel {NAME}_kernel")
    A("  .amdhsa_next_free_vgpr 256"); A("  .amdhsa_next_free_sgpr 102"); A("  .amdhsa_accum_offset 256")
    A("  .amdhsa_group_segment_fixed_size 0"); A("  .amdhsa_kernarg_size 96"); A("  .amdhsa_user_sgpr_count 2")
    A("  .amdhsa_user_sgpr_kernarg_segment_ptr 1"); A("  .amdhsa_system_sgpr_workgroup_id_x 1")
    A(".end_amdhsa_kernel")
    return "\n".join(L) + "\n"

if __name__ == "__main__":
    import ast
    out = sys.argv[1]
    kw = {}
    for a in sys.argv[2:]:
        k, v = a.split("=")
        try: v = ast.literal_eval(v)
        except Exception: pass
        kw[k] = v
    open(out, "w").write(gen(**kw))
```
